```python
import torch

def _softmax(x, axis=-1):
    return torch.softmax(x, dim=axis)
def _gelu(x):
    return torch.nn.functional.gelu(x, approximate="tanh")
def _silu(x):
    return torch.nn.functional.silu(x)
def _sigmoid(x):
    return torch.sigmoid(x)
def _layernorm(x, axis=-1, eps=1e-5):
    m = x.mean(dim=axis, keepdim=True)
    v = x.var(dim=axis, keepdim=True, unbiased=False)
    return (x - m) / torch.sqrt(v + eps)
def _scatter_add(tgt, idx, src, axis=0):
    return tgt.clone().index_add_(axis, idx, src)
def _segment_sum(src, seg, n):
    out = torch.zeros((n,) + src.shape[1:], dtype=src.dtype)
    return out.index_add_(0, seg, src)
def _pad(x, pw):
    flat = tuple(v for pair in reversed(pw) for v in pair)
    return torch.nn.functional.pad(x, flat)

kernel_name = 'standalone__modern_conv_block_convnext_v2__vision'

def setup_inputs():

    _w = (lambda a: (lambda t: t.to(torch.bfloat16) if t.is_floating_point() else t)(torch.as_tensor(a)))
    H = W = 512
    C = 96
    K = 1
    return {
        "x": _w((lambda *s: torch.randn(*s, dtype=torch.bfloat16) * 0.05)(1, H, W, C)),
        "dw": _w((lambda *s: torch.randn(*s, dtype=torch.bfloat16) * 0.05)(K, K, C)),
        "w1": _w((lambda *s: torch.randn(*s, dtype=torch.bfloat16) * 0.05)(C, 4 * C)),
        "w2": _w((lambda *s: torch.randn(*s, dtype=torch.bfloat16) * 0.05)(4 * C, C)),
        "grn_gamma": _w((lambda *s: torch.randn(*s, dtype=torch.bfloat16) * 0.05)(4 * C)),
        "grn_beta": _w((lambda *s: torch.randn(*s, dtype=torch.bfloat16) * 0.05)(4 * C)),
    }

def reference(x, dw, w1, w2, grn_gamma, grn_beta):
    B, H, W, C = x.shape
    K = dw.shape[0]
    pad = K // 2
    xp = _pad(x, ((0,0),(pad,pad),(pad,pad),(0,0)))
    out = torch.zeros_like(x)
    for i in range(K):
        for j in range(K):
            out = out + xp[:, i:i+H, j:j+W, :] * dw[i, j][None, None, None, :]
    h = _layernorm(out, axis=-1)
    h = torch.einsum('bhwc,ce->bhwe', h, w1)
    h = _gelu(h)
    gx = torch.sqrt((h * h).sum(axis=(1, 2), keepdims=True) + 1e-6)
    nx = gx / (gx.mean(axis=-1, keepdims=True) + 1e-6)
    h = grn_gamma * (h * nx) + grn_beta + h
    h = torch.einsum('bhwe,ec->bhwc', h, w2)
    return x + h
```

```python
import re

class R:
    __slots__ = ("cls", "i", "n")
    def __init__(self, cls, i, n=1):
        self.cls, self.i, self.n = cls, i, n
        lim = 256 if cls in "va" else 102
        assert 0 <= i and i + n <= lim, (cls, i, n)
    def __str__(self):
        return f"{self.cls}{self.i}" if self.n == 1 else f"{self.cls}[{self.i}:{self.i+self.n-1}]"
    __repr__ = __str__
    def regs(self):
        return {(self.cls, k) for k in range(self.i, self.i + self.n)}
    def sub(self, o, n=1):
        assert 0 <= o and o + n <= self.n, (self, o, n)
        return R(self.cls, self.i + o, n)
    def __getitem__(self, o):
        return self.sub(o, 1)

v = lambda i, n=1: R("v", i, n)
a = lambda i, n=1: R("a", i, n)
s = lambda i, n=1: R("s", i, n)

def _regs(x):
    if isinstance(x, R):
        return x.regs()
    if x in ("vcc", "exec", "m0", "scc"):
        return {(x, 0)}
    return set()

TRANS = ("v_exp_f32", "v_rcp_f32", "v_rsq_f32", "v_sqrt_f32", "v_log_f32")
VOP1 = TRANS + ("v_mov_b32", "v_cvt_f32_u32", "v_readfirstlane_b32", "v_permlane32_swap_b32", "v_permlane16_swap_b32")
VOP2 = ("v_add_f32", "v_sub_f32", "v_subrev_f32", "v_mul_f32", "v_fmac_f32", "v_max_f32", "v_min_f32", "v_and_b32", "v_or_b32",
        "v_xor_b32", "v_lshlrev_b32", "v_lshrrev_b32", "v_add_u32", "v_sub_u32", "v_subrev_u32", "v_mul_u32_u24", "v_cndmask_b32",
        "v_add_co_u32", "v_addc_co_u32", "v_max_u32", "v_min_u32", "v_fmaak_f32", "v_fmamk_f32")
VOPC = ("v_cmp_eq_u32", "v_cmp_ne_u32", "v_cmp_gt_u32", "v_cmp_lt_u32", "v_cmp_le_u32", "v_cmp_ge_u32")
INLINE_F = {"0.5", "-0.5", "1.0", "-1.0", "2.0", "-2.0", "4.0", "-4.0"}

def _is_literal(x):
    if isinstance(x, R) or x in ("vcc", "exec", "m0", "off", "scc", "exec_lo", "exec_hi"):
        return False
    if isinstance(x, int):
        return not (-16 <= x <= 64)
    x = str(x)
    if x.lstrip("-").startswith(("v", "s", "a", "|")):
        return False
    if x in INLINE_F:
        return False
    try:
        k = int(x, 0)
        return not (-16 <= k <= 64)
    except ValueError:
        return True

class I:
    def __init__(self, op, *ops, mods="", wr=None, rd=None, kind=None, tag=None):
        self.op, self.ops, self.mods, self.tag = op, ops, mods, tag
        self.e64 = False
        self.fix = {"lgkm": None, "vm": None, "nop": 0}
        self.kind = kind or self._kind()
        w, r = self._rw()
        self.wr = w if wr is None else wr
        self.rd = r if rd is None else rd
    def _kind(self):
        op = self.op
        if op.startswith("v_mfma"): return "mfma"
        if op in TRANS: return "trans"
        if op.startswith("v_pk_") or op.startswith("v_dot"): return "pk"
        if op.startswith("v_"): return "valu"
        if op.startswith("ds_read"): return "dsr"
        if op.startswith("ds_"): return "dsw"
        if op.startswith(("buffer_load", "global_load")): return "vml"
        if op.startswith(("buffer_store", "global_store", "buffer_atomic", "global_atomic")): return "vms"
        if op.startswith(("s_load", "s_memtime", "s_memrealtime")): return "smem"
        if op == "s_waitcnt": return "wait"
        if op == "s_nop": return "nop"
        if op == "s_barrier": return "barrier"
        if op.startswith(("s_cbranch", "s_branch", "s_endpgm")): return "branch"
        if op == "label": return "label"
        if op.startswith("s_"): return "salu"
        raise ValueError(op)
    def _rw(self):
        k, o, op = self.kind, self.ops, self.op
        U = lambda xs: set().union(*[_regs(x) for x in xs]) if xs else set()
        if k in ("wait", "nop", "barrier", "label"): return set(), set()
        if k == "branch":
            if "scc" in op: return set(), {("scc", 0)}
            if "vcc" in op: return set(), {("vcc", 0)}
            if "exec" in op: return set(), {("exec", 0)}
            return set(), set()
        if k == "dsw": return set(), U(o)
        if k == "vms":
            if "sc0" in self.mods and "atomic" in op: return U(o[:1]), U(o)
            return set(), U(o)
        if k == "vml":
            if "lds" in self.mods.split(): return set(), U(o) | {("m0", 0)}
            return U(o[:1]), U(o[1:])
        if k in ("dsr", "smem"): return U(o[:1]), U(o[1:])
        if k == "salu":
            if op.startswith(("s_cmp", "s_bitcmp")): return {("scc", 0)}, U(o)
            if op in ("s_setprio", "s_sleep"): return set(), set()
            w = U(o[:1]); r = U(o[1:])
            if op.startswith(("s_add", "s_sub", "s_and", "s_or", "s_xor", "s_lshl", "s_lshr", "s_andn2")): w |= {("scc", 0)}
            if op.startswith(("s_addc", "s_subb", "s_cselect")): r |= {("scc", 0)}
            if "saveexec" in op: w |= {("exec", 0)}; r |= {("exec", 0)}
            return w, r
        if op.startswith("v_permlane"): return U(o), U(o)
        if op in ("v_add_co_u32",): return U(o[:2]), U(o[2:])
        if op in ("v_addc_co_u32",): return U(o[:2]), U(o[2:])
        if op in ("v_fmac_f32", "v_writelane_b32") or op.startswith("v_dot2c"): return U(o[:1]), U(o)
        if "dpp" in op: return U(o[:1]), U(o)
        return U(o[:1]), U(o[1:])
    def size(self):
        k, op = self.kind, self.op
        if k == "label": return 0
        if k in ("wait", "nop", "barrier", "branch"): return 4
        if k in ("mfma", "pk", "dsr", "dsw", "vml", "vms", "smem"):
            if op == "v_dot2c_f32_bf16": return 4
            return 8
        lit = any(_is_literal(x) for x in self.ops)
        if k == "salu":
            if op in ("s_setprio", "s_sleep") or op.startswith(("s_movk", "s_addk", "s_cmpk", "s_getpc")): return 4
            return 8 if lit else 4
        if self.e64 or "dpp" in op or "sdwa" in op: return 8
        if op.startswith("v_accvgpr"): return 8
        e32 = op in VOP1 or op in VOP2 or op in VOPC
        if e32 and not self.mods:
            srcs = self.ops[1:]
            if op in VOP2:
                if op in ("v_add_co_u32", "v_addc_co_u32"):
                    ok = self.ops[1] == "vcc" and isinstance(self.ops[3], R) and self.ops[3].cls == "v"
                elif op == "v_cndmask_b32":
                    ok = self.ops[3] == "vcc" and isinstance(self.ops[2], R) and self.ops[2].cls == "v"
                elif op in ("v_fmaak_f32", "v_fmamk_f32"):
                    return 8
                else:
                    ok = isinstance(srcs[1], R) and srcs[1].cls == "v"
                if any(isinstance(x, str) and x.startswith(("-v", "|")) for x in srcs): ok = False
            elif op in VOPC:
                ok = self.ops[0] == "vcc" and isinstance(self.ops[2], R) and self.ops[2].cls == "v"
            else:
                ok = not any(isinstance(x, str) and x.startswith(("-v", "|")) for x in srcs)
            if ok: return 8 if lit else 4
        return 8
    def can_promote(self):
        return self.kind in ("valu", "trans") and self.size() == 4 and self.op not in (
            "v_readfirstlane_b32", "v_permlane32_swap_b32", "v_permlane16_swap_b32")
    def text(self):
        if self.kind == "label": return f"{self.ops[0]}:"
        op = self.op + ("_e64" if self.e64 else "")
        t = op
        if self.ops: t += " " + ", ".join(str(x) for x in self.ops)
        if self.mods: t += " " + self.mods
        return t

class Neg:
    def __init__(self, r): self.r = r

def label(n): return I("label", n)
def wait(vm=None, lgkm=None):
    p = []
    if vm is not None: p.append(f"vmcnt({vm})")
    if lgkm is not None: p.append(f"lgkmcnt({lgkm})")
    i = I("s_waitcnt", " ".join(p)); i.wvm, i.wlg = vm, lgkm
    return i
def nop(n): return I("s_nop", n)

LG_AGE = 100
VALU_KINDS = ("valu", "trans", "pk")
def _mfma_passes(i): return 8 if "32x32" in i.op else 4

def analyse(seq):
    changed = False
    lgq, vmq = [], []
    lgt = []
    clk = 0
    t = 0
    last_valu_w = {}
    last_trans_w = {}
    last_mfma_w = {}
    last_mfma_c = {}
    last_store_rd = {}
    last_valu_sw = {}
    last_m0 = -99
    for ins in seq:
        if ins.kind == "label": continue
        if ins.kind == "clear":
            lgq, vmq, lgt = [], [], []
            for d in (last_valu_w, last_trans_w, last_mfma_w, last_mfma_c, last_store_rd, last_valu_sw): d.clear()
            continue
        f = ins.fix
        touch = ins.rd | ins.wr
        need_lg = need_vm = None
        for k, d in enumerate(lgq):
            if d & touch: need_lg = min(len(lgq) - 1 - k, 15)
        for k, d in enumerate(vmq):
            if d & touch: need_vm = min(len(vmq) - 1 - k, 63)
        if need_lg is not None:
            young = sum(1 for x in lgt if clk - x < LG_AGE)
            need_lg = min(need_lg, young)
        if need_lg is not None and (f["lgkm"] is None or need_lg < f["lgkm"]): f["lgkm"] = need_lg; changed = True
        if need_vm is not None and (f["vm"] is None or need_vm < f["vm"]): f["vm"] = need_vm; changed = True
        pre = 0
        if f["lgkm"] is not None or f["vm"] is not None:
            pre += 1
            if f["lgkm"] is not None: lgq = lgq[max(0, len(lgq) - f["lgkm"]):] if f["lgkm"] else []; lgt = lgt[len(lgt) - len(lgq):]
            if f["vm"] is not None: vmq = vmq[max(0, len(vmq) - f["vm"]):] if f["vm"] else []
        need = 0
        def req(t0, ws):
            nonlocal need
            have = (t + pre + f["nop"]) - t0 - 1
            if ws - have > need: need = ws - have
        k = ins.kind
        isv = k in VALU_KINDS
        if k == "mfma":
            for r in ins.rd:
                if r in last_valu_w: req(last_valu_w[r], 2)
            cr = ins.ops[3].regs() if isinstance(ins.ops[3], R) else set()
            ab = ins.ops[1].regs() | ins.ops[2].regs()
            for r in ab:
                if r in last_mfma_w: req(last_mfma_w[r][0], 12 if _mfma_passes(last_mfma_w[r][1]) == 8 else 8)
            for r in cr | ins.wr:
                if r in last_mfma_w:
                    p = last_mfma_w[r][1]
                    same = p.wr == cr and p.op == ins.op and r in cr
                    if not same and not (p.wr == ins.wr and p.op == ins.op and r not in cr):
                        req(last_mfma_w[r][0], 10 if _mfma_passes(p) == 8 else 6)
        else:
            for r in touch:
                if r in last_mfma_w and (isv or k in ("dsr", "dsw", "vml", "vms")):
                    req(last_mfma_w[r][0], 12 if _mfma_passes(last_mfma_w[r][1]) == 8 else 8)
            if isv or k in ("dsr", "vml"):
                for r in ins.wr:
                    if r in last_mfma_c: req(last_mfma_c[r][0], 7 if last_mfma_c[r][1] == 8 else 3)
        if k != "trans":
            for r in ins.rd:
                if r in last_trans_w: req(last_trans_w[r], 1)
        if ins.op.startswith("v_permlane") or "dpp" in ins.op:
            for r in ins.rd:
                if r in last_valu_w: req(last_valu_w[r], 2)
        if ins.op.startswith(("v_readfirstlane", "v_readlane")):
            for r in ins.rd:
                if r in last_valu_w: req(last_valu_w[r], 1)
        for r in ins.rd:
            if r in last_valu_sw:
                if isv: req(last_valu_sw[r], 2)
                elif k in ("vml", "vms"): req(last_valu_sw[r], 5)
                else: req(last_valu_sw[r], 4)
        for r in ins.wr:
            if r in last_store_rd: req(last_store_rd[r], 2)
        if ("m0", 0) in ins.rd: req(last_m0, 1)
        if need > 0:
            f["nop"] += need; changed = True
        t += pre + f["nop"]
        if k == "wait":
            if ins.wlg is not None: lgq = lgq[max(0, len(lgq) - ins.wlg):] if ins.wlg else []; lgt = lgt[len(lgt) - len(lgq):]
            if ins.wvm is not None: vmq = vmq[max(0, len(vmq) - ins.wvm):] if ins.wvm else []
        if k in ("dsr", "dsw"): lgq.append(set(ins.wr)); lgt.append(clk)
        clk += 4 * (pre + f["nop"]) + (8 if k in ("trans", "mfma") else 4)
        if k in ("vml", "vms"): vmq.append(set(ins.wr))
        if k == "smem": pass
        if isv:
            for r in ins.wr:
                if r[0] in "va": last_valu_w[r] = t
                else: last_valu_sw[r] = t
                last_trans_w.pop(r, None); last_mfma_w.pop(r, None)
            if k == "trans":
                for r in ins.wr: last_trans_w[r] = t
        elif k == "mfma":
            for r in ins.wr:
                last_mfma_w[r] = (t, ins); last_valu_w.pop(r, None); last_trans_w.pop(r, None)
            if isinstance(ins.ops[3], R):
                for r in ins.ops[3].regs(): last_mfma_c[r] = (t, _mfma_passes(ins))
        else:
            for r in ins.wr:
                last_valu_w.pop(r, None); last_trans_w.pop(r, None); last_valu_sw.pop(r, None)
                if k in ("dsr", "vml"): last_mfma_w.pop(r, None)
        if k == "vms" and ("x4" in ins.op or "x3" in ins.op):
            for r in ins.ops[0].regs(): last_store_rd[r] = t
        if ("m0", 0) in ins.wr: last_m0 = t
        t += ins.ops[0] + 1 if k == "nop" else 1
    return changed

def clear():
    i = I("label", "x"); i.kind = "clear"
    return i

def expand(ins):
    out = []
    f = ins.fix
    if ins.kind == "clear": return out
    if f["lgkm"] is not None or f["vm"] is not None: out.append(wait(f["vm"], f["lgkm"]))
    n = f["nop"]
    while n > 0:
        k = min(n, 16); out.append(nop(k - 1)); n -= k
    out.append(ins)
    return out

def finalize(exec_seq, layout_seq):
    for _ in range(20):
        if not analyse(exec_seq): break
    else:
        raise RuntimeError("analysis did not converge")
    out = []
    for ins in layout_seq: out += expand(ins)
    align(out)
    return out

def align(seq, run=3):
    off = 0
    n = len(seq)
    last_small = None
    for k, ins in enumerate(seq):
        if ins.kind == "label":
            if getattr(ins, "align", 0): off = 0
            last_small = None
            continue
        sz = ins.size()
        if sz == 8 and off % 8 == 4:
            m = 0
            while k + m < n and seq[k + m].kind != "label" and seq[k + m].size() == 8: m += 1
            if m >= run and last_small is not None:
                last_small.e64 = True; off += 4; last_small = None
        if sz == 4 and ins.can_promote(): last_small = ins
        off += sz

def emit(seq):
    L = []
    for ins in seq:
        if ins.kind == "label" and getattr(ins, "align", 0): L.append(f".p2align {ins.align}")
        L.append(ins.text())
    return "\n".join(L)

def timing(seq, lds_lat=96, marks=None):
    t = 0; last_m = -999; last_mp = 0
    ready = {}; lgq = []; st = {"pk": 0, "mfma": 0, "lgkm": 0, "dep": 0}
    cnt = {}
    for ins in seq:
        k = ins.kind
        if k in ("label", "clear"):
            if marks is not None and k == "label": marks.append((ins.ops[0], t))
            continue
        cnt[k] = cnt.get(k, 0) + 1
        if k == "wait":
            if ins.wlg is not None:
                while len(lgq) > ins.wlg:
                    x = lgq.pop(0)
                    if x > t: st["lgkm"] += x - t; t = x
            t += 4; continue
        if k == "nop": t += 4 * (ins.ops[0] + 1); continue
        if k == "pk" and t < last_m + last_mp + 12:
            st["pk"] += last_m + last_mp + 12 - t; t = last_m + last_mp + 12
        if k == "mfma" and t < last_m + last_mp:
            st["mfma"] += last_m + last_mp - t; t = last_m + last_mp
        r = max([ready.get(x, 0) for x in ins.rd | ins.wr] + [0])
        if k == "mfma" and isinstance(ins.ops[3], R) and ins.ops[3].regs() == ins.wr:
            r = max([ready.get(x, 0) for x in ins.ops[1].regs() | ins.ops[2].regs()] + [0])
        if r > t: st["dep"] += r - t; t = r
        if k == "mfma":
            last_m = t; last_mp = 4 * _mfma_passes(ins)
            for x in ins.wr: ready[x] = t + last_mp + 12
            t += 8
        elif k == "trans": t += 8
        else:
            if k in ("dsr", "dsw"): lgq.append(t + lds_lat)
            t += 4
    return t, st, cnt
```

```python
import math, sys, struct, argparse
from asmlib import *

KERNEL = "standalone__modern_conv_block_convnext_v2__vision_kernel"
NWG = 256
X_BYTES = 512 * 512 * 96 * 2
TILE_B = 32 * 192
W1F, W2F, MISC = 0, 73728, 147456
STG = MISC
DIAG = MISC + 8192
IDENT_REL = 1584
BETA = MISC + 10304
BIASP = MISC + 11072
BIAS = MISC + 12608
SARR = MISC + 12992
LDS_BYTES = 163840
PART = 0
TOT = 393216
TOT_STRIDE = 2048
POISON = -1

def f2u(x): return struct.unpack("<I", struct.pack("<f", x))[0]
ALPHA = 2.0 * math.sqrt(2.0 / math.pi) * math.log2(math.e)
BETAC = ALPHA * 0.044715
CS = BETAC ** (1.0 / 3.0)
AC = ALPHA / CS
H = lambda x: hex(f2u(x))

sX, sOUT, sW1, sW2, sWS, sDBG, sDW, sGAM, sBET = (s(24 + 4 * i, 4) for i in range(9))
sNA, sONE = s(60, 2), s(62, 2)
sXO, sOO, sWAVE = s(64), s(65), s(66)
sT = lambda i: s(67 + i)
sPL, sPH = s(76), s(77)
sCNT = s(78)
sSAVE = s(80, 2)
vB0, vB1, vX, vSW, vSR, vD0, vD1, vB2 = (v(i) for i in range(8))
Y = [v(16, 16), v(32, 16)]
T = v(48, 16)
XA = v(64, 24)
WF = [v(88 + 4 * k, 4) for k in range(3)]
ACC1 = v(100, 24)
XB, Y32, XR = v(128, 24), v(152, 48), v(200, 24)
ST1 = v(8, 6)

def stash(n, sig):
    if n == 4: return a(4 * sig, 4)
    if n == 5: return a(96 + 4 * sig, 4)
    if n == 6: return a(192 + 4 * sig, 4) if sig < 16 else v(224 + 4 * (sig - 16), 4)
    return v(128 + 4 * sig, 4)

def mfma(d, A, B, c=None):
    return I("v_mfma_f32_32x32x16_bf16", d, A, B, d if c is None else c)
def lds_frag(dst, addr):
    base, off = (vB0, addr) if addr < 65536 else (vB1, addr - 65536) if addr < 131072 else (vB2, addr - 131072)
    return I("ds_read_b128", dst, base, mods=f"offset:{off}")
def w1frag(dst, J, k): return lds_frag(dst, W1F + (J * 6 + k) * 1024)
def w2frag(dst, sig, t): return lds_frag(dst, W2F + (sig * 3 + t) * 1024)
def pk(op, d, *src, mods=""): return I("v_pk_" + op + "_f32", d, *src, mods=mods)
def cost(i): return 8 if i.kind in ("trans", "mfma") else 4

def weave(ms, fill, gap=24, tail=36):
    n = len(ms)
    if n == 0: return list(fill)
    fill = list(fill)
    total = sum(map(cost, fill)) + sum(cost(x) for _, at in ms for x in at)
    room = max(0, total - max(tail, total - gap * (n - 1)))
    out = []; used = 0
    for k, (m, at) in enumerate(ms):
        out.append(m); out += at
        used += sum(map(cost, at))
        if k == n - 1: break
        target = room * (k + 1) / (n - 1)
        while fill and used + cost(fill[0]) / 2 <= target:
            x = fill.pop(0); out.append(x); used += cost(x)
    return out + fill

def merge(main, side):
    if not side: return list(main)
    out = []; j = 0
    for k, x in enumerate(main):
        out.append(x)
        e = (k + 1) * len(side) // len(main)
        out += side[j:e]; j = e
    return out + side[j:]

class Side:
    def __init__(self): self.d = {}
    def add(self, j, ph, items, kind="f"):
        self.d.setdefault((j, ph, kind), []).extend(items)
    def get(self, j, ph, kind="f"): return self.d.get((j, ph, kind), [])

def xloads(dst, n):
    return [I("s_mov_b32", sXO, n * 4 * TILE_B)] + [
        I("buffer_load_dwordx4", dst.sub(4 * k, 4), vX, sX, sXO, mods=f"offen offset:{16*k}") for k in range(6)]
def ostores(src, n):
    return [I("s_mov_b32", sOO, n * 4 * TILE_B)] + [
        I("buffer_store_dwordx4", src.sub(4 * k, 4), vX, sOUT, sOO, mods=f"offen offset:{16*k}") for k in range(6)]
def diag_reads(dst):
    return [I("ds_read_b128", dst.sub(8 * t + 4 * u, 4), (vD0, vD1)[u], mods=f"offset:{528*t}") for t in range(3) for u in range(2)]
def ln_mfmas(y32, dg, xr):
    return [mfma(y32.sub(16 * t, 16), dg.sub(8 * t + 4 * u, 4), xr.sub(8 * t + 4 * u, 4), 0 if u == 0 else None)
            for t in range(3) for u in range(2)]
def ln_sums(y32, st, scalar=False):
    s1, s2 = st.sub(0, 2), st.sub(2, 2)
    L = []
    if not scalar:
        for k in range(24):
            y = y32.sub(2 * k, 2)
            if k == 1: L.append(pk("add", s1, y32.sub(0, 2), y))
            elif k > 1: L.append(pk("add", s1, s1, y))
            L.append(pk("mul", s2, y, y) if k == 0 else pk("fma", s2, y, y, s2))
    else:
        for k in range(48):
            y = y32[k]
            if k in (2, 3): L.append(I("v_add_f32", s1[k & 1], y32[k - 2], y))
            elif k > 3: L.append(I("v_add_f32", s1[k & 1], s1[k & 1], y))
            L.append(I("v_mul_f32", s2[k & 1], y, y) if k < 2 else I("v_fmac_f32", s2[k & 1], y, y))
    return L
def ln_stats(st):
    A, B, C, D, Rr, M = st[0], st[1], st[2], st[3], st[4], st[5]
    return [I("v_add_f32", A, A, B), I("v_add_f32", C, C, D), I("v_permlane32_swap_b32", A, C),
            I("v_add_f32", A, A, C), I("v_mov_b32", C, A), I("v_permlane32_swap_b32", A, C),
            I("v_mul_f32", M, H(1 / 96), A), I("v_mul_f32", C, H(1 / 96), C), I("v_fma_f32", C, f"-{M}", M, C, rd=M.regs() | C.regs()),
            I("v_max_f32", C, 0, C), I("v_add_f32", C, H(1e-5), C), I("v_rsq_f32", Rr, C),
            I("v_mul_f32", Rr, H(CS), Rr), I("v_mul_f32", M, M, Rr)]
def ln_norm(y32, st, scalar=False):
    rm = st.sub(4, 2)
    if not scalar:
        return [pk("fma", y32.sub(2 * k, 2), y32.sub(2 * k, 2), rm, rm,
                   mods="op_sel:[0,0,1] op_sel_hi:[1,0,1] neg_lo:[0,0,1] neg_hi:[0,0,1]") for k in range(24)]
    return [I("v_fma_f32", y32[k], y32[k], rm[0], f"-{rm[1]}", rd=y32[k].regs() | rm.regs()) for k in range(48)]
def cvts(dst, src, n): return [I("v_cvt_pk_bf16_f32", dst[m], src[2 * m], src[2 * m + 1]) for m in range(n)]

def gelu_parts(y, yn):
    d = {}
    d["exp"] = [I("v_exp_f32", T[i], T[i]) for i in range(16)]
    d["rcp"] = [I("v_rcp_f32", T[i], T[i]) for i in range(16)]
    P2 = lambda r, i: r.sub(2 * i, 2)
    d["add"] = [pk("add", P2(T, i), P2(T, i), sONE) for i in range(8)]
    d["mul"] = [pk("mul", P2(y, i), P2(T, i), P2(y, i)) for i in range(8)]
    d["a1"] = [pk("fma", P2(T, i), P2(yn, i), P2(yn, i), sNA, mods="neg_lo:[1,0,0] neg_hi:[1,0,0]") for i in range(8)]
    d["a2"] = [pk("mul", P2(T, i), P2(T, i), P2(yn, i)) for i in range(8)]
    return d

def stash_ops(n, J, buf):
    pre = cvts(buf, buf, 8) + [I("ds_write_b128", vSW, buf.sub(4 * k, 4), mods=f"offset:{128*k}") for k in range(2)]
    post = [I("ds_read_b64_tr_b16", stash(n, 2 * J + u).sub(2 * w, 2), vSR, mods=f"offset:{1024*u+512*w}")
            for u in range(2) for w in range(2)]
    return pre, post

XBUF1 = lambda n: XB if n % 2 == 0 else XA

def p1_group(n, j, side, last=False):
    y, yn = Y[j % 2], Y[(j + 1) % 2]
    g = gelu_parts(y, yn)
    n1, j1 = (n, j + 1) if j < 11 else (n + 1, 0)
    n2, j2 = (n1, j1 + 1) if j1 < 11 else (n1 + 1, 0)
    pn, pj = (n, j - 1) if j > 0 else (n - 1, 11)
    L = [label(f"p1_{n}_{j}")]
    post = []
    if pn >= 4:
        pre, post = stash_ops(pn, pj, yn); L += pre
    m1, m2 = [], []
    if not last:
        xn = XBUF1(n1)
        for k in range(6):
            nxt = [w1frag(WF[k % 3], j1, k + 3)] if k < 3 else ([w1frag(WF[k % 3], j2, k - 3)] if n2 < 8 else [])
            (m1 if k < 3 else m2).append((mfma(yn, xn.sub(4 * k, 4), WF[k % 3], 0 if k == 0 else None), nxt))
    m1 += [(m, []) for m in side.get(j, "T1", "m")]
    m2 += [(m, []) for m in side.get(j, "T2", "m")]
    L += weave(m1, merge(g["exp"], post + side.get(j, "T1")))
    L += g["add"] + side.get(j, "P1")
    L += weave(m2, merge(g["rcp"], side.get(j, "T2")))
    acc = ACC1.sub(2 * j, 2)
    sq = [pk("mul", acc, y.sub(0, 2), y.sub(0, 2)) if (n == 0 and i == 0) else pk("fma", acc, y.sub(2 * i, 2), y.sub(2 * i, 2), acc)
          for i in range(8)]
    L += g["mul"]
    if not last:
        for i in range(8): L += [sq[i], g["a1"][i]]
        L += g["a2"]
    else:
        L += sq
    L += side.get(j, "P2")
    return L

def p1_side(n):
    sd = Side()
    if n == 7: return sd
    xn = XBUF1(n + 1)
    dg = diag_reads(xn)
    sd.add(0, "T1", dg[:3]); sd.add(0, "T2", dg[3:])
    mm = ln_mfmas(Y32, xn, XR)
    sd.add(1, "T1", mm[0:2], "m"); sd.add(1, "T2", mm[2:4], "m"); sd.add(2, "T1", mm[4:6], "m")
    if n + 2 < 8: sd.add(2, "T2", xloads(XR, n + 2))
    sd.add(2, "P2", ln_sums(Y32, ST1))
    sd.add(3, "T1", ln_stats(ST1))
    sd.add(3, "P2", ln_norm(Y32, ST1))
    c = cvts(xn, Y32, 24)
    sd.add(4, "T1", c[:12]); sd.add(4, "T2", c[12:])
    return sd

OOB = 0x40000000

def prologue(cfg):
    L = []; e = L.append
    e(I("s_cmp_ge_u32", s(2), NWG)); e(I("s_cbranch_scc1", "L_end"))
    L += stamp(cfg)
    e(I("s_load_dwordx16", s(4, 16), s(0, 2), 0)); e(I("s_load_dwordx2", s(20, 2), s(0, 2), 64))
    tmp = lambda i: v(224 + i)
    lane, p, h = tmp(0), tmp(1), tmp(2)
    e(I("v_lshrrev_b32", tmp(3), 6, v(0)))
    e(I("v_and_b32", lane, 63, v(0)))
    e(I("v_readfirstlane_b32", sWAVE, tmp(3)))
    e(I("v_mov_b32", tmp(15), v(0)))
    tid = tmp(15)
    e(I("v_and_b32", p, 31, lane)); e(I("v_lshrrev_b32", h, 5, lane))
    e(I("v_lshlrev_b32", vB0, 4, lane))
    e(I("v_add_u32", vB1, 65536, vB0)); e(I("v_add_u32", vB2, 131072, vB0))
    e(I("s_lshl_b32", sT(0), s(2), 5)); e(I("s_add_u32", sT(0), sT(0), sWAVE)); e(I("s_mul_i32", sT(0), sT(0), TILE_B))
    e(I("v_mul_u32_u24", vX, 192, p)); e(I("v_mul_u32_u24", tmp(3), 96, h))
    e(I("v_add3_u32", vX, vX, tmp(3), sT(0)))
    e(wait(lgkm=0))
    for srd, ptr, size in ((sX, 4, X_BYTES), (sDW, 6, 192), (sW1, 8, 73728), (sW2, 10, 73728), (sGAM, 12, 768), (sBET, 14, 768),
                           (sOUT, 16, X_BYTES), (sDBG, 18, 256), (sWS, 20, TOT + 16 * TOT_STRIDE)):
        if (cfg.get("dbg") or cfg.get("stamps")) and srd is sWS: size = 1 << 28
        e(I("s_mov_b32", srd[0], s(ptr))); e(I("s_and_b32", srd[1], s(ptr + 1), 0xffff))
        e(I("s_mov_b32", srd[2], size)); e(I("s_mov_b32", srd[3], 0x20000))
    for k in range(4): e(I("v_mov_b32", tmp(4 + k), POISON))
    e(I("s_mul_i32", sT(1), s(2), 1536)); e(I("s_mul_i32", sT(2), sWAVE, 384)); e(I("s_add_u32", sT(1), sT(1), sT(2)))
    e(I("v_mov_b32", tmp(9), OOB))
    e(I("v_cmp_gt_u32", "vcc", 24, lane)); e(I("v_cndmask_b32", tmp(8), tmp(9), vB0, "vcc"))
    c1 = I("buffer_store_dwordx4", v(228, 4), tmp(8), sWS, sT(1), mods="offen sc1", wr={("fake", 0)}); e(c1)
    R_ = cfg["reps"]
    e(I("s_cmp_lt_u32", s(2), 96)); e(I("s_cselect_b32", sT(3), R_, 0))
    e(I("v_lshlrev_b32", tmp(10), 11, tid)); e(I("s_lshl_b32", sT(4), s(2), 4)); e(I("v_add_u32", tmp(10), sT(4), tmp(10)))
    e(I("v_cmp_gt_u32", "vcc", sT(3), tid)); e(I("v_cndmask_b32", tmp(10), tmp(9), tmp(10), "vcc"))
    e(I("s_mov_b32", sT(4), TOT))
    e(I("buffer_store_dwordx4", v(228, 4), tmp(10), sWS, sT(4), mods="offen sc1", wr={("fake", 1)}))
    q, hr, c0 = tmp(11), tmp(12), tmp(13)
    e(I("v_bfe_u32", q, p, 3, 1)); e(I("v_and_b32", tmp(3), 3, p)); e(I("v_lshl_add_u32", q, q, 2, tmp(3)))
    e(I("v_bfe_u32", hr, p, 2, 1)); e(I("v_lshrrev_b32", tmp(3), 4, p))
    e(I("v_lshl_add_u32", c0, tmp(3), 3, q)); e(I("v_mad_u32_u24", c0, hr, 48, c0)); e(I("v_lshlrev_b32", c0, 1, c0))
    dwv = [tmp(16 + t) for t in range(3)]
    for t in range(3): e(I("buffer_load_ushort", dwv[t], c0, sDW, 0, mods=f"offen offset:{32*t}"))
    L += xloads(XR, 0)
    wv = tmp(14)
    e(I("v_mul_u32_u24", wv, 24, p))
    e(I("s_mov_b32", sT(5), 48 * 768)); e(I("v_mad_u32_u24", wv, h, sT(5), wv))
    RW = lambda i, qq: v(16 + 32 * i + 4 * qq, 3)
    su = []
    for i in range(3):
        e(I("s_mul_i32", sT(0), sWAVE, 3)); e(I("s_add_u32", sT(0), sT(0), i))
        e(I("s_lshr_b32", sT(1), sT(0), 1)); e(I("s_and_b32", sT(2), sT(0), 1))
        e(I("s_mul_i32", sT(3), sT(1), 6144)); e(I("s_mul_i32", sT(4), sT(2), 12)); e(I("s_add_u32", sT(3), sT(3), sT(4)))
        e(I("s_add_u32", sT(4), sT(3), 3072))
        for qq in range(8):
            e(I("buffer_load_dwordx3", RW(i, qq), wv, sW1, sT(3 if qq < 4 else 4), mods=f"offen offset:{768*(qq%4)}"))
        d = s(84 + i)
        e(I("s_mul_i32", d, sT(2), 36)); e(I("s_add_u32", d, d, sT(1))); e(I("s_lshl_b32", d, d, 10)); su.append(d)
    e(I("s_mul_i32", sT(0), sWAVE, 18432))
    for c in range(5):
        e(I("s_add_u32", sT(1), sT(0), 4096 * c)); e(I("s_add_u32", sT(2), sT(1), W2F)); e(I("s_mov_b32", "m0", sT(2)))
        for k in range(4 if c < 4 else 2):
            e(I("buffer_load_dwordx4", vB0, sW2, sT(1), mods=f"offen offset:{1024*k} lds"))
    if cfg.get("pf", 1):
        e(I("s_getpc_b64", s(88, 2))); e(label("L_pc"))
        e(I("s_add_u32", s(88), s(88), "L_pf0-L_pc")); e(I("s_addc_u32", s(89), s(89), 0))
        e(I("s_lshr_b32", sT(0), s(2), 3)); e(I("s_and_b32", sT(0), sT(0), 3)); e(I("s_lshl_b32", sT(0), sT(0), 15))
        e(I("v_lshlrev_b32", tmp(20), 7, tid)); e(I("v_add_u32", tmp(20), sT(0), tmp(20)))
        e(I("s_mov_b32", sT(1), "L_pf1-L_pf0-4"))
        e(I("v_mov_b32", tmp(23), s(89)))
        e(I("v_min_u32", tmp(21), sT(1), tmp(20)))
        e(I("v_add_co_u32", tmp(24), "vcc", s(88), tmp(21)))
        e(I("v_addc_co_u32", tmp(25), "vcc", 0, tmp(23), "vcc"))
        e(I("global_load_dword", a(255), v(248, 2), "off"))
    e(I("s_lshl_b32", sT(0), sWAVE, 11)); e(I("s_add_u32", sT(0), sT(0), STG))
    t3, t19 = tmp(3), tmp(19)
    e(I("v_lshrrev_b32", t3, 2, p)); e(I("v_lshlrev_b32", vSW, 8, t3))
    e(I("v_xor_b32", t3, hr, h)); e(I("v_lshl_add_u32", vSW, t3, 6, vSW))
    e(I("v_and_b32", t3, 3, p)); e(I("v_lshl_add_u32", vSW, t3, 4, vSW)); e(I("v_add_u32", vSW, sT(0), vSW))
    e(I("v_lshlrev_b32", vSR, 8, h))
    e(I("v_bfe_u32", t3, lane, 4, 1)); e(I("v_lshl_add_u32", vSR, t3, 7, vSR))
    e(I("v_and_b32", t3, 1, lane)); e(I("v_xor_b32", t3, t3, h)); e(I("v_lshl_add_u32", vSR, t3, 6, vSR))
    e(I("v_bfe_u32", t3, lane, 2, 2)); e(I("v_lshl_add_u32", vSR, t3, 4, vSR))
    e(I("v_bfe_u32", t3, lane, 1, 1)); e(I("v_lshl_add_u32", vSR, t3, 3, vSR)); e(I("v_add_u32", vSR, sT(0), vSR))
    e(I("v_lshlrev_b32", t19, 4, p)); e(I("v_add_u32", t19, DIAG, t19))
    e(I("v_mov_b32", tmp(9), DIAG + 512))
    for u, d in ((0, vD0), (1, vD1)):
        e(I("v_lshrrev_b32", t3, 4, p)); e(I("v_xor_b32", t3, u, t3)); e(I("v_xor_b32", d, hr, h)); e(I("v_or_b32", t3, t3, d))
        e(I("v_cmp_eq_u32", "vcc", 0, t3)); e(I("v_cndmask_b32", d, tmp(9), t19, "vcc"))
    wa = tmp(10)
    e(I("v_cmp_eq_u32", "vcc", 0, h)); e(I("v_cndmask_b32", wa, tmp(9), t19, "vcc"))
    e(I("v_and_b32", t3, 1, q)); e(I("v_lshlrev_b32", t3, 4, t3)); e(I("v_mov_b32", tmp(8), 0xffff)); e(I("v_lshlrev_b32", tmp(8), t3, tmp(8)))
    e(I("v_lshrrev_b32", t3, 1, q)); e(I("v_lshl_or_b32", t3, h, 3, t3))
    MK = v(112, 4)
    for m in range(4):
        e(I("v_cmp_eq_u32", "vcc", m, t3)); e(I("v_cndmask_b32", MK[m], 0, tmp(8), "vcc"))
    DT = v(116, 4)
    for m in range(4): e(I("v_and_b32", DT[m], 0x3f803f80, MK[m]))
    e(I("ds_write_b128", wa, DT, mods=f"offset:{IDENT_REL}"))
    for t in range(3):
        D2 = v(120, 4) if t % 2 == 0 else DT
        e(I("v_lshl_or_b32", dwv[t], dwv[t], 16, dwv[t]))
        for m in range(4): e(I("v_and_b32", D2[m], dwv[t], MK[m]))
        e(I("ds_write_b128", wa, D2, mods=f"offset:{528*t}"))
    e(I("s_mov_b32", sNA[0], H(-AC))); e(I("s_mov_b32", sNA[1], H(-AC)))
    e(I("s_mov_b32", sONE[0], 1.0)); e(I("s_mov_b32", sONE[1], 1.0))
    e(I("s_mov_b32", sPL, 0x05040100)); e(I("s_mov_b32", sPH, 0x07060302))
    L += diag_reads(XB)
    L += ln_mfmas(Y32, XB, XR)
    L += xloads(XR, 1)
    pb = 0
    for i in range(3):
        e(I("v_add_u32", v(124), su[i], vB0))
        for jj in range(6):
            F = v(112 + 4 * (pb % 3), 4); pb += 1
            for m in range(4):
                e(I("v_perm_b32", F[m], RW(i, 2 * m + 1)[jj // 2], RW(i, 2 * m)[jj // 2], sPH if jj % 2 else sPL))
            e(I("ds_write_b128", v(124), F, mods=f"offset:{6144*jj}"))
    L += ln_sums(Y32, ST1) + ln_stats(ST1) + ln_norm(Y32, ST1) + cvts(XB, Y32, 24)
    e(I("v_mov_b32", v(124), OOB)); e(I("v_mov_b32", v(126), 0)); e(I("v_cmp_eq_u32", "vcc", 0, tid))
    e(I("v_cndmask_b32", v(124), v(124), v(126), "vcc"))
    e(I("v_mov_b32", v(125), 1))
    e(I("s_nop", 0, rd={("fake", 0), ("fake", 1)}))
    e(wait(lgkm=0)); e(I("s_barrier"))
    e(I("buffer_atomic_add", v(125), v(124), sDBG, 0, mods="offen sc1"))
    for k in range(3): e(w1frag(WF[k], 0, k))
    for k in range(6):
        e(mfma(Y[0], XB.sub(4 * k, 4), WF[k % 3], 0 if k == 0 else None))
        e(w1frag(WF[k % 3], 0, k + 3) if k < 3 else w1frag(WF[k % 3], 1, k - 3))
    g = gelu_parts(Y[1], Y[0])
    L += g["a1"] + g["a2"]
    return L

STAMPS = []
def stamp(cfg):
    if not cfg.get("stamps"): return []
    k = len(STAMPS); STAMPS.append(k)
    if k == 0:
        return [I("s_memtime", s(96, 2)), I("s_memrealtime", s(98, 2))]
    assert k <= 8
    return [I("s_memtime", s(100, 2)), I("s_memrealtime", s(82, 2)), wait(lgkm=0),
            I("s_mov_b32", s(2 + 2 * k), s(100)), I("s_mov_b32", s(3 + 2 * k), s(82))]
def stamp_dump(cfg):
    if not cfg.get("stamps"): return []
    L = [wait(vm=0, lgkm=0), nop(15), I("s_lshl_b32", sT(0), s(2), 2), I("s_add_u32", sT(0), sT(0), sWAVE), I("s_lshl_b32", sT(0), sT(0), 8),
         I("s_add_u32", sT(0), sT(0), 1 << 20), I("v_mov_b32", v(16), 0)]
    for k in range(len(STAMPS)):
        a0, a1 = (s(96), s(98)) if k == 0 else (s(2 + 2 * k), s(3 + 2 * k))
        L += [I("v_mov_b32", v(18), a0), I("v_mov_b32", v(19), a1),
              I("buffer_store_dwordx2", v(18, 2), v(16), sWS, sT(0), mods=f"offen offset:{8*k}"), nop(1)]
    return L

def spin_begin(name, limit):
    return [I("s_mov_b32", sCNT, limit), label(name)]
def spin_end(name, done):
    return [I("s_cbranch_vccz", done), I("s_sub_u32", sCNT, sCNT, 1), I("s_cmp_lg_u32", sCNT, 0), I("s_cbranch_scc1", name), label(done)]
SPIN = 1 << 17

def check_cleared(tag, t0):
    L = spin_begin(f"L_clr{tag}", SPIN)
    L += [I("v_mov_b32", t0, 0), I("buffer_load_dword", t0, t0, sDBG, 0, mods="offen sc1"), wait(vm=0),
          I("v_cmp_gt_u32", "vcc", NWG, t0), nop(4)]
    return L + spin_end(f"L_clr{tag}", f"L_clrd{tag}")

def sync_phase(cfg):
    L = []; e = L.append
    e(label("sync"))
    pre, post = stash_ops(7, 11, Y[1]); L += pre + post
    A = ACC1
    for J in range(12): e(I("v_add_f32", A[2 * J], A[2 * J], A[2 * J + 1]))
    for m in range(6):
        e(I("v_permlane32_swap_b32", A[4 * m], A[4 * m + 2]))
    for m in range(6): e(I("v_add_f32", A[4 * m], A[4 * m], A[4 * m + 2]))
    t = lambda i: v(16 + i)
    lane4 = t(0)
    e(I("v_lshrrev_b32", lane4, 2, vB0))
    e(I("s_lshl_b32", sT(0), sWAVE, 11)); e(I("s_add_u32", sT(0), sT(0), STG)); e(I("v_add_u32", t(1), sT(0), lane4))
    for m in range(6): e(I("ds_write_b32", t(1), A[4 * m], mods=f"offset:{256*m}"))
    e(wait(vm=0, lgkm=0)); e(I("s_barrier")); e(clear())
    e(I("s_lshl_b32", sT(0), sWAVE, 10)); e(I("v_add_u32", t(2), sT(0), vB0))
    e(I("v_add_u32", t(3), STG, t(2)))
    for w in range(4): e(I("ds_read_b128", v(24 + 4 * w, 4), t(3), mods=f"offset:{2048*w}"))
    e(I("v_mov_b32", t(4), OOB)); e(I("v_cmp_gt_u32", "vcc", 1536, t(2))); e(I("v_cndmask_b32", t(2), t(4), t(2), "vcc"))
    for k in (0, 2):
        e(pk("add", v(24 + k, 2), v(24 + k, 2), v(28 + k, 2))); e(pk("add", v(32 + k, 2), v(32 + k, 2), v(36 + k, 2)))
    for k in (0, 2): e(pk("add", v(24 + k, 2), v(24 + k, 2), v(32 + k, 2)))
    e(I("s_mul_i32", sT(1), s(2), 1536))
    e(I("buffer_store_dwordx4", v(24, 4), t(2), sWS, sT(1), mods="offen sc1"))
    e(I("s_cmp_lg_u32", sWAVE, 3)); e(I("s_cbranch_scc1", "L_nored"))
    e(I("s_cmp_ge_u32", s(2), 96)); e(I("s_cbranch_scc1", "L_nored"))
    L += check_cleared("a", t(5))
    e(I("v_mul_u32_u24", t(5), 96, vB0)); e(I("s_lshl_b32", sT(1), s(2), 4)); e(I("v_add_u32", t(5), sT(1), t(5)))
    for k in range(1, 4): e(I("s_mov_b32", s(90 + k), 64 * 1536 * k))
    L += spin_begin("L_red", SPIN)
    for k in range(4):
        e(I("buffer_load_dwordx4", v(24 + 4 * k, 4), t(5), sWS, s(90 + k) if k else 0, mods="offen sc1"))
    e(wait(vm=0))
    e(I("v_max3_u32", t(6), v(24), v(25), v(26)))
    for k in range(27, 39, 2): e(I("v_max3_u32", t(6), t(6), v(k), v(k + 1)))
    e(I("v_max_u32", t(6), t(6), v(39)))
    e(I("v_cmp_eq_u32", "vcc", POISON, t(6))); e(nop(4))
    L += spin_end("L_red", "L_redd")
    e(clear())
    for k in (0, 2):
        e(pk("add", v(24 + k, 2), v(24 + k, 2), v(28 + k, 2))); e(pk("add", v(32 + k, 2), v(32 + k, 2), v(36 + k, 2)))
    for k in (0, 2): e(pk("add", v(24 + k, 2), v(24 + k, 2), v(32 + k, 2)))
    e(I("v_permlane32_swap_b32", v(24), v(25))); e(I("v_permlane32_swap_b32", v(26), v(27)))
    e(I("v_add_f32", v(24), v(24), v(25))); e(I("v_add_f32", v(26), v(26), v(27)))
    e(I("v_permlane16_swap_b32", v(24), v(26))); e(I("v_add_f32", v(24), v(24), v(26)))
    for r in (8, 4, 2, 1):
        e(I("v_add_f32_dpp", v(24), v(24), v(24), mods=f"row_ror:{r} row_mask:0xf bank_mask:0xf"))
    e(I("v_lshrrev_b32", t(6), 4, vB0))
    e(I("v_and_b32", t(7), 15, t(6))); e(I("v_lshrrev_b32", t(6), 4, t(6)))
    e(I("v_and_b32", t(9), 1, t(6))); e(I("v_lshrrev_b32", t(6), 1, t(6))); e(I("v_lshl_or_b32", t(6), t(9), 1, t(6)))
    e(I("v_lshlrev_b32", t(6), 2, t(6))); e(I("v_lshl_add_u32", t(6), t(7), 11, t(6))); e(I("v_add_u32", t(6), sT(1), t(6)))
    e(I("v_cmp_gt_u32", "vcc", cfg["reps"], t(7))); e(I("v_cndmask_b32", t(6), t(4), t(6), "vcc"))
    e(I("s_mov_b32", sT(2), TOT))
    e(I("buffer_store_dword", v(24), t(6), sWS, sT(2), mods="offen sc1"))
    e(wait(vm=0, lgkm=0)); e(nop(1))
    e(label("L_nored")); e(clear())
    L += stamp(cfg)
    RF = lambda jj, u, tt: v(16 + 4 * ((jj * 2 + u) * 3 + tt), 4)
    BF = lambda jj, u: v(104 + 4 * (jj * 2 + u), 4)
    BD = v(88, 16)
    lane, ta, tb = v(8), v(9), v(10)
    e(I("v_lshrrev_b32", lane, 4, vB0))
    e(I("v_bfe_u32", ta, lane, 3, 1)); e(I("v_lshlrev_b32", tb, 4, ta))
    e(I("v_bfe_u32", ta, lane, 1, 1)); e(I("v_lshl_add_u32", tb, ta, 3, tb))
    e(I("v_bfe_u32", ta, lane, 2, 1)); e(I("v_lshl_add_u32", tb, ta, 2, tb))
    e(I("v_and_b32", ta, 1, lane)); e(I("v_lshl_add_u32", tb, ta, 1, tb))
    e(I("v_mul_u32_u24", tb, 12, tb)); e(I("v_lshrrev_b32", ta, 4, lane)); e(I("v_add_u32", tb, tb, ta))
    e(I("s_mul_i32", sT(0), sWAVE, 3)); e(I("v_add_u32", tb, sT(0), tb)); e(I("v_lshlrev_b32", tb, 1, tb))
    e(I("buffer_load_ushort", v(11), tb, sBET, 0, mods="offen")); e(I("buffer_load_ushort", v(12), tb, sBET, 0, mods="offen offset:24"))
    e(I("v_and_b32", ta, 15, lane)); e(I("v_mul_u32_u24", ta, 48, ta)); e(I("v_lshrrev_b32", v(13), 4, lane)); e(I("v_lshl_add_u32", ta, v(13), 1, ta))
    tr = v(13)
    e(I("v_lshrrev_b32", tr, 5, lane)); e(I("v_lshlrev_b32", tr, 2, tr)); e(I("v_bfe_u32", tb, lane, 2, 2)); e(I("v_add_u32", tr, tr, tb))
    e(I("v_mul_u32_u24", tr, 2304, tr))
    e(I("v_and_b32", tb, 1, lane)); e(I("v_mad_u32_u24", tr, tb, s(94), tr)); L.insert(len(L) - 1, I("s_mov_b32", s(94), 96))
    e(I("v_bfe_u32", tb, lane, 4, 1)); e(I("v_lshl_add_u32", tr, tb, 4, tr))
    e(I("v_bfe_u32", tb, lane, 1, 1)); e(I("v_lshl_add_u32", tr, tb, 3, tr))
    e(I("s_mul_i32", sT(1), sWAVE, 576)); e(I("s_add_u32", sT(1), sT(1), W2F)); e(I("v_add_u32", tr, sT(1), tr))
    for jj in range(3):
        for u in range(2):
            for tt in range(3):
                for w in range(2):
                    e(I("ds_read_b64_tr_b16", RF(jj, u, tt).sub(2 * w, 2), tr, mods=f"offset:{(16*u+8*w)*2304+jj*192+32*tt}"))
    e(I("v_lshl_or_b32", v(11), v(12), 16, v(11)))
    e(I("s_mul_i32", sT(2), sWAVE, 192)); e(I("s_add_u32", sT(2), sT(2), BETA))
    e(I("v_lshlrev_b32", v(12), 2, lane)); e(I("v_add_u32", v(12), sT(2), v(12)))
    e(I("s_mov_b32", "exec_hi", 0xffff, wr={("exec", 0)}))
    e(I("ds_write_b32", v(12), v(11)))
    e(I("s_mov_b32", "exec_hi", -1, wr={("exec", 0)}))
    e(I("v_lshrrev_b32", v(12), 5, lane)); e(I("v_lshlrev_b32", v(12), 4, v(12))); e(I("v_add_u32", v(12), sT(2), v(12)))
    for jj in range(3):
        for u in range(2): e(I("ds_read_b128", BF(jj, u), v(12), mods=f"offset:{64*jj+32*u}"))
    e(I("s_mul_i32", sT(2), sWAVE, 384)); e(I("s_add_u32", sT(2), sT(2), BIASP))
    e(I("v_lshrrev_b32", v(12), 5, lane)); e(I("v_mul_u32_u24", v(12), 192, v(12))); e(I("v_add_u32", v(12), sT(2), v(12)))
    for tt in range(3):
        for k in range(6): e(mfma(BD, RF(k // 2, k % 2, tt), BF(k // 2, k % 2), 0 if k == 0 else None))
        e(I("s_mov_b32", "exec_lo", 1, wr={("exec", 0)}, rd=BD.regs())); e(I("s_mov_b32", "exec_hi", 1, wr={("exec", 0)}))
        for j in range(4): e(I("ds_write_b128", v(12), BD.sub(4 * j, 4), mods=f"offset:{64*tt+16*j}"))
        e(I("s_mov_b64", "exec", -1))
    e(wait(vm=0, lgkm=0)); e(nop(7)); e(clear())
    e(I("s_cmp_lg_u32", sWAVE, 0)); e(I("s_cbranch_scc1", "L_notot"))
    GM = v(88, 6); TV = v(96, 6)
    for k in range(3):
        for i in range(2): e(I("buffer_load_ushort", GM[2 * k + i], ta, sGAM, 0, mods=f"offen offset:{8*k+24*i}"))
    L += check_cleared("b", v(11))
    e(I("s_and_b32", sT(1), s(2), cfg["reps"] - 1)); e(I("s_lshl_b32", sT(1), sT(1), 11)); e(I("s_add_u32", sT(1), sT(1), TOT))
    e(I("v_lshlrev_b32", v(11), 3, lane))
    L += spin_begin("L_tot", SPIN)
    for k in range(3): e(I("buffer_load_dwordx2", TV.sub(2 * k, 2), v(11), sWS, sT(1), mods=f"offen offset:{512*k} sc1"))
    e(wait(vm=0))
    e(I("v_max3_u32", v(12), TV[0], TV[1], TV[2])); e(I("v_max3_u32", v(12), v(12), TV[3], TV[4])); e(I("v_max_u32", v(12), v(12), TV[5]))
    e(I("v_cmp_eq_u32", "vcc", POISON, v(12))); e(nop(4))
    L += spin_end("L_tot", "L_totd")
    e(clear())
    for k in range(6): e(I("v_mul_f32", TV[k], H(1 / (CS * CS)), TV[k]))
    for k in range(6): e(I("v_add_f32", TV[k], H(1e-6), TV[k]))
    for k in range(6): e(I("v_sqrt_f32", TV[k], TV[k]))
    for k in range(6): e(I("v_lshlrev_b32", GM[k], 16, GM[k]))
    sm, s2 = v(104), v(105)
    e(I("v_add_f32", sm, TV[0], TV[1])); e(I("v_add_f32", s2, TV[2], TV[3])); e(I("v_add_f32", sm, sm, TV[4])); e(I("v_add_f32", s2, s2, TV[5]))
    e(I("v_add_f32", sm, sm, s2))
    for r in (8, 4, 2, 1): e(I("v_add_f32_dpp", sm, sm, sm, mods=f"row_ror:{r} row_mask:0xf bank_mask:0xf"))
    e(I("v_mov_b32", s2, sm)); e(I("v_permlane16_swap_b32", sm, s2)); e(I("v_add_f32", sm, sm, s2))
    e(I("v_mov_b32", s2, sm)); e(I("v_permlane32_swap_b32", sm, s2)); e(I("v_add_f32", sm, sm, s2))
    e(I("v_mul_f32", sm, H(1 / 384), sm)); e(I("v_add_f32", sm, H(1e-6), sm))
    e(I("v_rcp_f32", s2, sm))
    e(I("v_fma_f32", v(106), f"-{sm}", s2, 1.0, rd=sm.regs() | s2.regs())); e(I("v_fmac_f32", s2, v(106), s2))
    e(I("v_mul_f32", s2, H(1 / CS), s2))
    for k in range(6): e(I("v_mul_f32", TV[k], TV[k], s2))
    for k in range(6): e(I("v_fmaak_f32", TV[k], TV[k], GM[k], H(1 / CS)))
    e(I("v_add_u32", v(11), SARR, v(11)))
    for k in range(3): e(I("ds_write_b64", v(11), TV.sub(2 * k, 2), mods=f"offset:{512*k}"))
    e(wait(vm=0, lgkm=0))
    e(label("L_notot")); e(I("s_barrier")); e(clear())
    L += stamp(cfg)
    e(I("s_lshl_b32", sT(0), sWAVE, 8)); e(I("v_lshlrev_b32", v(9), 2, lane)); e(I("v_add_u32", v(9), sT(0), v(9)))
    e(I("v_min_u32", v(9), 380, v(9))); e(I("v_add_u32", v(9), BIASP, v(9)))
    for w in range(4): e(I("ds_read_b32", v(120 + w), v(9), mods=f"offset:{384*w}"))
    e(I("s_mul_i32", sT(0), sWAVE, 384)); e(I("s_add_u32", sT(0), sT(0), SARR))
    e(I("v_lshrrev_b32", v(10), 5, lane)); e(I("v_lshlrev_b32", v(10), 4, v(10))); e(I("v_add_u32", v(10), sT(0), v(10)))
    SV = lambda k: v(88 + 8 * (k % 2), 8)
    def sread(k):
        jj, u = k // 2, k % 2
        return [I("ds_read_b128", SV(k).sub(4 * w, 4), v(10), mods=f"offset:{128*jj+64*u+32*w}") for w in range(2)]
    L += sread(0) + sread(1)
    e(I("v_add_f32", v(120), v(120), v(121))); e(I("v_add_f32", v(122), v(122), v(123))); e(I("v_add_f32", v(120), v(120), v(122)))
    e(I("ds_write_b32", v(9), v(120), mods=f"offset:{BIAS-BIASP}"))
    e(I("s_mul_i32", sT(1), sWAVE, 18432)); e(I("v_add_u32", v(11), sT(1), vB1))
    for k in range(6):
        jj, u = k // 2, k % 2
        for tt in range(3):
            F = RF(jj, u, tt); U = v(104 + 8 * (tt % 2), 8)
            for m in range(4):
                e(I("v_lshlrev_b32", U[2 * m], 16, F[m])); e(I("v_and_b32", U[2 * m + 1], 0xffff0000, F[m]))
            for m in range(4): e(pk("mul", U.sub(2 * m, 2), U.sub(2 * m, 2), SV(k).sub(2 * m, 2)))
            L += cvts(F, U, 4)
            e(I("ds_write_b128", v(11), F, mods=f"offset:{W2F-65536+((jj*2+u)*3+tt)*1024}"))
        if k + 2 < 6: L += sread(k + 2)
    e(I("v_lshrrev_b32", vSW, 5, lane)); e(I("v_mul_u32_u24", vSW, 192, vSW)); e(I("v_add_u32", vSW, BIAS, vSW))
    e(wait(lgkm=0)); e(I("s_barrier"))
    return L

vBIAS = vSW
IDF = [v(8, 4), v(12, 4)]
def bias_reads(acc, t): return [I("ds_read_b128", acc.sub(16 * t + 4 * j, 4), vBIAS, mods=f"offset:{64*t+16*j}") for j in range(4)]
def res_mfmas(acc, xr): return [mfma(acc.sub(16 * t, 16), IDF[u], xr.sub(8 * t + 4 * u, 4)) for t in range(3) for u in range(2)]

XR2 = [a(216, 24), a(0, 24)]
DG2 = a(24, 24)
F1 = [a(48 + 4 * k, 4) for k in range(6)]
F2 = [a(72 + 4 * k, 4) for k in range(6)]
G = v(88, 8)
AC2 = [v(128, 48), v(176, 48)]
X2 = [XA, v(224, 24)]
ST2 = v(248, 6)

def pair(na, nb, acca, accb, xa, xb, first, extra, tail_order):
    PF = [v(112 + 4 * k, 4) for k in range(4)]
    L = [label(f"p2pair_{na}")]
    seq = [(sig, t) for sig in range(24) for t in range(3)]
    if first:
        L += [I("ds_read_b128", IDF[u], (vD0, vD1)[u], mods=f"offset:{IDENT_REL}") for u in range(2)]
        for t in range(3): L += bias_reads(acca, t)
        for k in range(3): L.append(w2frag(PF[k], *seq[k]))
    pend = []
    for k, (sig, t) in enumerate(seq):
        if t == 0: pend += extra.get(sig, [])
        f = PF[k % 4]
        da, db = acca.sub(16 * t, 16), accb.sub(16 * t, 16)
        L.append(mfma(db, f, stash(nb, sig), da if sig == 0 else None))
        if k + 3 < 72: L.append(w2frag(PF[(k + 3) % 4], *seq[k + 3]))
        n = min(len(pend), 2); L += pend[:n]; pend = pend[n:]
        L.append(mfma(da, f, stash(na, sig)))
        n = min(len(pend), 3); L += pend[:n]; pend = pend[n:]
    L += pend
    return L

def pass2_pairs():
    L = []
    a1, b1 = v(16, 48), v(64, 48)
    x6, x7 = a(192, 24), a(216, 24)
    ex = {6: xloads(x6, 6), 12: xloads(x7, 7) + sum((bias_reads(AC2[0], t) for t in range(3)), [])}
    L += pair(6, 7, a1, b1, x6, x7, True, ex, None)
    PF = [v(112 + 4 * k, 4) for k in range(4)]
    ra, rb = res_mfmas(a1, x6), res_mfmas(b1, x7)
    pf = [w2frag(PF[k], 0, k) for k in range(3)]
    for k in range(6):
        L += [ra[k]] + ([pf[k]] if k < 3 else []) + [rb[k]]
    x4, x5 = v(224, 24), a(192, 24)
    ex = {0: xloads(x4, 4) + xloads(x5, 5) + xloads(XR2[0], 0),
          1: cvts(a1, a1, 24) + ostores(a1, 6) + cvts(b1, b1, 24) + ostores(b1, 7),
          6: diag_reads(X2[0]), 12: diag_reads(DG2), 18: [w1frag(F1[k], 0, k) for k in range(6)]}
    y32 = v(16, 48)
    L2 = pair(4, 5, AC2[0], AC2[1], x4, x5, False, ex, None)
    idx = [i for i, x in enumerate(L2) if x.kind == "mfma"]
    ins = {}
    mm = ln_mfmas(y32, X2[0], XR2[0])
    for k, m in enumerate(mm): ins.setdefault(idx[6 * 7 + 2 * k], []).append(m)
    sc = xloads(XR2[1], 1) + ln_sums(y32, ST2, True) + ln_stats(ST2) + ln_norm(y32, ST2, True) + cvts(X2[0], y32, 24)
    pos = 6 * 9
    while sc:
        ins.setdefault(idx[pos], []).extend(sc[:4]); sc = sc[4:]; pos += 1
    assert pos < len(idx)
    for i, x in enumerate(L2):
        L.append(x); L += ins.get(i, [])
    ra, rb = res_mfmas(AC2[0], x4), res_mfmas(AC2[1], x5)
    L += ra
    g1 = [mfma(Y[0], F1[k], X2[0].sub(4 * k, 4), 0 if k == 0 else None) for k in range(6)]
    ep = cvts(AC2[0], AC2[0], 24) + ostores(AC2[0], 4)
    fill = [w1frag(F1[k], 1, k) for k in range(6)]
    L += rb[:3]
    ms = [(m, []) for m in rb[3:]] + [(g1[k], [fill[k]]) for k in range(6)]
    L += weave(ms, ep + sum((bias_reads(AC2[0], t) for t in range(3)), []), gap=20, tail=0)
    g = gelu_parts(Y[1], Y[0])
    L += g["a1"] + g["a2"]
    return L

def p2_group(n, j, side, last=False):
    y, yn = Y[j % 2], Y[(j + 1) % 2]
    g = gelu_parts(y, yn)
    n1, j1 = (n, j + 1) if j < 11 else (n + 1, 0)
    n2, j2 = (n1, j1 + 1) if j1 < 11 else (n1 + 1, 0)
    pn, pj = (n, j - 1) if j > 0 else (n - 1, 11)
    L = [label(f"p2_{n}_{j}")]
    m1, m2 = [], []
    if pn >= 0:
        L += cvts(G, yn, 8)
        acc = AC2[pn % 2]
        for k in range(6):
            u, t = k // 3, k % 3
            m2.append((mfma(acc.sub(16 * t, 16), F2[k], G.sub(4 * u, 4)), []))
    f1 = [w1frag(F1[k], j2, k) for k in range(6)] if (n2 < 4 and not last) else []
    f2 = [w2frag(F2[k], 2 * j + k // 3, k % 3) for k in range(6)]
    if not last:
        xn = X2[n1 % 2]
        for k in range(6):
            m1.append((mfma(yn, F1[k], xn.sub(4 * k, 4), 0 if k == 0 else None), []))
    m1 += [(m, []) for m in side.get(j, "T1", "m")]
    m2 += [(m, []) for m in side.get(j, "T2", "m")]
    L += weave(m1, merge(g["exp"], side.get(j, "T1")) + f1)
    L += g["add"] + side.get(j, "P1")
    L += weave(m2, merge(g["rcp"], side.get(j, "T2")) + f2)
    L += g["mul"]
    if not last: L += g["a1"] + g["a2"]
    L += side.get(j, "P2")
    return L

def p2_side(n):
    sd = Side()
    prev = AC2[(n + 1) % 2]
    xo = X2[(n + 1) % 2]
    if n == 0:
        r0 = res_mfmas(AC2[0], XR2[0])
        sd.add(0, "T2", r0, "m")
    c = cvts(xo, prev, 24); st = ostores(xo, 5 if n == 0 else n - 1)
    sd.add(1, "T1", c[0:8] + st[0:3]); sd.add(1, "T2", c[8:16] + st[3:5]); sd.add(2, "T1", c[16:24] + st[5:7])
    if n == 3: return sd
    xr = XR2[(n + 1) % 2]
    mm = ln_mfmas(prev, DG2, xr)
    for k, (j, ph) in enumerate(((1, "T2"), (2, "T1"), (2, "T2"), (3, "T1"), (3, "T2"), (4, "T1"))):
        sd.add(j, ph, [mm[k]], "m")
    if n + 2 < 4: sd.add(2, "T2", xloads(XR2[n % 2], n + 2))
    sm = ln_sums(prev, ST2)
    sd.add(2, "P2", sm[:15]); sd.add(3, "P2", sm[15:31]); sd.add(4, "P2", sm[31:])
    sd.add(5, "T1", ln_stats(ST2))
    sd.add(5, "P2", ln_norm(prev, ST2))
    c = cvts(xo, prev, 24)
    sd.add(6, "T1", c[0:8]); sd.add(6, "T2", c[8:16] + bias_reads(prev, 0)); sd.add(7, "T1", c[16:24] + bias_reads(prev, 1))
    sd.add(7, "T2", bias_reads(prev, 2))
    rr = res_mfmas(prev, xr)
    for k, (j, ph) in enumerate(((7, "T1"), (7, "T2"), (8, "T1"), (8, "T2"), (9, "T1"), (9, "T2"))):
        sd.add(j, ph, [rr[k]], "m")
    return sd

def tail():
    L = [label("tail")]
    L += cvts(G, Y[1], 8)
    acc = AC2[1]
    for k in range(6):
        u, t = k // 3, k % 3
        L.append(mfma(acc.sub(16 * t, 16), F2[k], G.sub(4 * u, 4)))
    L += cvts(acc, acc, 24) + ostores(acc, 3)
    return L

def build(cfg):
    P = prologue(cfg)
    P.append(label("L_pf0"))
    P += stamp(cfg)
    for n in range(8):
        if n == 4: P += stamp(cfg)
        sd = p1_side(n)
        for j in range(12): P += p1_group(n, j, sd, last=(n == 7 and j == 11))
    P += stamp(cfg)
    P += sync_phase(cfg)
    P += stamp(cfg)
    P += pass2_pairs()
    P += stamp(cfg)
    for n in range(4):
        sd = p2_side(n)
        for j in range(12): P += p2_group(n, j, sd, last=(n == 3 and j == 11))
    P += tail()
    P += stamp(cfg)
    P += stamp_dump(cfg)
    P.append(label("L_pf1"))
    P.append(label("L_end"))
    return finalize(P, P)

HEADER = """; ConvNeXt-V2 block (1x1 depthwise, LayerNorm, 96->384 GEMM, tanh-GELU, GRN, 384->96 GEMM, residual), gfx950.
; @launch grid=(256,1,1) block=(256,1,1) lds=163840
.amdgcn_target "amdgcn-amd-amdhsa--gfx950"
.text
.globl {k}
.p2align 8
.type {k},@function
{k}:
"""
FOOTER = """
s_endpgm
.section .rodata,"a"
.p2align 6
.amdhsa_kernel {k}
  .amdhsa_next_free_vgpr 512
  .amdhsa_next_free_sgpr 102
  .amdhsa_accum_offset 256
  .amdhsa_group_segment_fixed_size 0
  .amdhsa_kernarg_size 72
  .amdhsa_user_sgpr_count 2
  .amdhsa_user_sgpr_kernarg_segment_ptr 1
  .amdhsa_system_sgpr_workgroup_id_x 1
  .amdhsa_float_denorm_mode_32 3
.end_amdhsa_kernel
"""
USED_LABELS = ("L_",)
def render(seq, keep_labels=False):
    body = [x for x in seq if x.kind != "label" or keep_labels or x.ops[0].startswith("L_")]
    return HEADER.format(k=KERNEL) + emit(body) + FOOTER.format(k=KERNEL)

if __name__ == "__main__":
    ap = argparse.ArgumentParser()
    ap.add_argument("-o", default="standalone__modern_conv_block_convnext_v2__vision.s")
    ap.add_argument("--reps", type=int, default=8)
    ap.add_argument("--pf", type=int, default=1)
    ap.add_argument("--dbg", type=int, default=0)
    ap.add_argument("--marks", action="store_true")
    ap.add_argument("--stamps", type=int, default=0)
    A = ap.parse_args()
    cfg = dict(reps=A.reps, pf=A.pf, pfn=8, dbg=A.dbg, stamps=A.stamps)
    seq = build(cfg)
    txt = render(seq)
    open(A.o, "w").write(txt)
    marks = []
    tot, st, cnt = timing(seq, marks=marks)
    nb = sum(x.size() for x in seq)
    print(f"{len(seq)} items, {nb} code bytes, {len(txt)} chars; model cycles {tot}, stalls {st}\n{cnt}")
    if A.marks:
        for (n0, t0), (n1, t1) in zip(marks, marks[1:]): print(n0, t1 - t0)
```

```python
import math, sys, struct, argparse
from asmlib import *

KERNEL = "standalone__modern_conv_block_convnext_v2__vision_kernel"
NWG = 256
X_BYTES = 512 * 512 * 96 * 2
TILE_B = 32 * 192
W1F, W2F, MISC = 0, 73728, 147456
STG = MISC
DIAG = MISC + 8192
IDENT_REL = 1584
BETA = MISC + 10304
BIASP = MISC + 11072
BIAS = MISC + 12608
SARR = MISC + 12992
LDS_BYTES = 163840
PART = 0
TOT = 393216
TOT_STRIDE = 2048
POISON = -1

def f2u(x): return struct.unpack("<I", struct.pack("<f", x))[0]
ALPHA = 2.0 * math.sqrt(2.0 / math.pi) * math.log2(math.e)
BETAC = ALPHA * 0.044715
CS = BETAC ** (1.0 / 3.0)
AC = ALPHA / CS
H = lambda x: hex(f2u(x))

sX, sOUT, sW1, sW2, sWS, sDBG, sDW, sGAM, sBET = (s(24 + 4 * i, 4) for i in range(9))
sNA, sONE = s(60, 2), s(62, 2)
sXO, sOO, sWAVE = s(64), s(65), s(66)
sT = lambda i: s(67 + i)
sPL, sPH = s(76), s(77)
sCNT = s(78)
sSAVE = s(80, 2)
vB0, vB1, vX, vSW, vSR, vD0, vD1, vB2 = (v(i) for i in range(8))
Y = [v(16, 16), v(32, 16)]
T = v(48, 16)
XA = v(64, 24)
WF = [v(88 + 4 * k, 4) for k in range(3)]
ACC1 = v(100, 24)
XB, Y32, XR = v(128, 24), v(152, 48), v(200, 24)
ST1 = v(8, 6)

def stash(n, sig):
    if n == 4: return a(4 * sig, 4)
    if n == 5: return a(96 + 4 * sig, 4)
    if n == 6: return a(192 + 4 * sig, 4) if sig < 16 else v(224 + 4 * (sig - 16), 4)
    return v(128 + 4 * sig, 4)

def mfma(d, A, B, c=None):
    return I("v_mfma_f32_32x32x16_bf16", d, A, B, d if c is None else c)
def lds_frag(dst, addr):
    base, off = (vB0, addr) if addr < 65536 else (vB1, addr - 65536) if addr < 131072 else (vB2, addr - 131072)
    return I("ds_read_b128", dst, base, mods=f"offset:{off}")
def w1frag(dst, J, k): return lds_frag(dst, W1F + (J * 6 + k) * 1024)
def w2frag(dst, sig, t): return lds_frag(dst, W2F + (sig * 3 + t) * 1024)
def pk(op, d, *src, mods=""): return I("v_pk_" + op + "_f32", d, *src, mods=mods)
def cost(i): return 8 if i.kind in ("trans", "mfma") else 4

def weave(ms, fill, gap=24, tail=36):
    n = len(ms)
    if n == 0: return list(fill)
    fill = list(fill)
    total = sum(map(cost, fill)) + sum(cost(x) for _, at in ms for x in at)
    room = max(0, total - max(tail, total - gap * (n - 1)))
    out = []; used = 0
    for k, (m, at) in enumerate(ms):
        out.append(m); out += at
        used += sum(map(cost, at))
        if k == n - 1: break
        target = room * (k + 1) / (n - 1)
        while fill and used + cost(fill[0]) / 2 <= target:
            x = fill.pop(0); out.append(x); used += cost(x)
    return out + fill

def merge(main, side):
    if not side: return list(main)
    out = []; j = 0
    for k, x in enumerate(main):
        out.append(x)
        e = (k + 1) * len(side) // len(main)
        out += side[j:e]; j = e
    return out + side[j:]

class Side:
    def __init__(self): self.d = {}
    def add(self, j, ph, items, kind="f"):
        self.d.setdefault((j, ph, kind), []).extend(items)
    def get(self, j, ph, kind="f"): return self.d.get((j, ph, kind), [])

CFG = {}
def xloads(dst, n):
    if CFG.get("noload"): return [I("s_mov_b32", sXO, 0)] + [I("s_mov_b32", sT(8), 0) for k in range(6)]
    return [I("s_mov_b32", sXO, n * 4 * TILE_B)] + [
        I("buffer_load_dwordx4", dst.sub(4 * k, 4), vX, sX, sXO, mods=f"offen offset:{16*k} {CFG.get('lmod', '')}".strip()) for k in range(6)]
def ostores(src, n):
    if CFG.get("nostore"): return [I("s_mov_b32", sOO, 0)] + [I("s_mov_b32", sT(8), 0) for k in range(6)]
    return [I("s_mov_b32", sOO, n * 4 * TILE_B)] + [
        I("buffer_store_dwordx4", src.sub(4 * k, 4), vX, sOUT, sOO, mods=f"offen offset:{16*k} {CFG.get('smod', '')}".strip()) for k in range(6)]
def diag_reads(dst):
    return [I("ds_read_b128", dst.sub(8 * t + 4 * u, 4), (vD0, vD1)[u], mods=f"offset:{528*t}") for t in range(3) for u in range(2)]
def ln_mfmas(y32, dg, xr):
    return [mfma(y32.sub(16 * t, 16), dg.sub(8 * t + 4 * u, 4), xr.sub(8 * t + 4 * u, 4), 0 if u == 0 else None)
            for t in range(3) for u in range(2)]
def ln_sums(y32, st, scalar=False):
    s1, s2 = st.sub(0, 2), st.sub(2, 2)
    L = []
    if not scalar:
        for k in range(24):
            y = y32.sub(2 * k, 2)
            if k == 1: L.append(pk("add", s1, y32.sub(0, 2), y))
            elif k > 1: L.append(pk("add", s1, s1, y))
            L.append(pk("mul", s2, y, y) if k == 0 else pk("fma", s2, y, y, s2))
    else:
        for k in range(48):
            y = y32[k]
            if k in (2, 3): L.append(I("v_add_f32", s1[k & 1], y32[k - 2], y))
            elif k > 3: L.append(I("v_add_f32", s1[k & 1], s1[k & 1], y))
            L.append(I("v_mul_f32", s2[k & 1], y, y) if k < 2 else I("v_fmac_f32", s2[k & 1], y, y))
    return L
def ln_stats(st):
    A, B, C, D, Rr, M = st[0], st[1], st[2], st[3], st[4], st[5]
    return [I("v_add_f32", A, A, B), I("v_add_f32", C, C, D), I("v_permlane32_swap_b32", A, C),
            I("v_add_f32", A, A, C), I("v_mov_b32", C, A), I("v_permlane32_swap_b32", A, C),
            I("v_mul_f32", M, H(1 / 96), A), I("v_mul_f32", C, H(1 / 96), C), I("v_fma_f32", C, f"-{M}", M, C, rd=M.regs() | C.regs()),
            I("v_max_f32", C, 0, C), I("v_add_f32", C, H(1e-5), C), I("v_rsq_f32", Rr, C),
            I("v_mul_f32", Rr, H(CS), Rr), I("v_mul_f32", M, M, Rr)]
def ln_norm(y32, st, scalar=False):
    rm = st.sub(4, 2)
    if not scalar:
        return [pk("fma", y32.sub(2 * k, 2), y32.sub(2 * k, 2), rm, rm,
                   mods="op_sel:[0,0,1] op_sel_hi:[1,0,1] neg_lo:[0,0,1] neg_hi:[0,0,1]") for k in range(24)]
    return [I("v_fma_f32", y32[k], y32[k], rm[0], f"-{rm[1]}", rd=y32[k].regs() | rm.regs()) for k in range(48)]
def cvts(dst, src, n): return [I("v_cvt_pk_bf16_f32", dst[m], src[2 * m], src[2 * m + 1]) for m in range(n)]

def gelu_parts(y, yn):
    d = {}
    d["exp"] = [I("v_exp_f32", T[i], T[i]) for i in range(16)]
    d["rcp"] = [I("v_rcp_f32", T[i], T[i]) for i in range(16)]
    P2 = lambda r, i: r.sub(2 * i, 2)
    d["add"] = [pk("add", P2(T, i), P2(T, i), sONE) for i in range(8)]
    d["mul"] = [pk("mul", P2(y, i), P2(T, i), P2(y, i)) for i in range(8)]
    d["a1"] = [pk("fma", P2(T, i), P2(yn, i), P2(yn, i), sNA, mods="neg_lo:[1,0,0] neg_hi:[1,0,0]") for i in range(8)]
    d["a2"] = [pk("mul", P2(T, i), P2(T, i), P2(yn, i)) for i in range(8)]
    return d

def stash_ops(n, J, buf):
    pre = cvts(buf, buf, 8) + [I("ds_write_b128", vSW, buf.sub(4 * k, 4), mods=f"offset:{128*k}") for k in range(2)]
    post = [I("ds_read_b64_tr_b16", stash(n, 2 * J + u).sub(2 * w, 2), vSR, mods=f"offset:{1024*u+512*w}")
            for u in range(2) for w in range(2)]
    if CFG.get("nostw"): pre = pre[:8]
    if CFG.get("nostr"): post = []
    if CFG.get("nocvt"): pre = pre[8:]
    return pre, post

XBUF1 = lambda n: XB if n % 2 == 0 else XA

def p1_group(n, j, side, last=False):
    y, yn = Y[j % 2], Y[(j + 1) % 2]
    g = gelu_parts(y, yn)
    n1, j1 = (n, j + 1) if j < 11 else (n + 1, 0)
    n2, j2 = (n1, j1 + 1) if j1 < 11 else (n1 + 1, 0)
    pn, pj = (n, j - 1) if j > 0 else (n - 1, 11)
    L = [label(f"p1_{n}_{j}")]
    post = []
    if pn >= 4:
        pre, post = stash_ops(pn, pj, yn); L += pre
    m1, m2 = [], []
    if not last:
        xn = XBUF1(n1)
        for k in range(6):
            nxt = [w1frag(WF[k % 3], j1, k + 3)] if k < 3 else ([w1frag(WF[k % 3], j2, k - 3)] if n2 < 8 else [])
            (m1 if k < 3 else m2).append((mfma(yn, xn.sub(4 * k, 4), WF[k % 3], 0 if k == 0 else None), nxt))
    m1 += [(m, []) for m in side.get(j, "T1", "m")]
    m2 += [(m, []) for m in side.get(j, "T2", "m")]
    L += weave(m1, merge(g["exp"], post + side.get(j, "T1")))
    L += g["add"] + side.get(j, "P1")
    L += weave(m2, merge(g["rcp"], side.get(j, "T2")))
    acc = ACC1.sub(2 * j, 2)
    sq = [pk("mul", acc, y.sub(0, 2), y.sub(0, 2)) if (n == 0 and i == 0) else pk("fma", acc, y.sub(2 * i, 2), y.sub(2 * i, 2), acc)
          for i in range(8)]
    L += g["mul"]
    if not last:
        for i in range(8): L += [sq[i], g["a1"][i]]
        L += g["a2"]
    else:
        L += sq
    L += side.get(j, "P2")
    return L

def p1_side(n):
    sd = Side()
    if n == 7: return sd
    xn = XBUF1(n + 1)
    dg = diag_reads(xn)
    sd.add(0, "T1", dg[:3]); sd.add(0, "T2", dg[3:])
    mm = ln_mfmas(Y32, xn, XR)
    sd.add(1, "T1", mm[0:2], "m"); sd.add(1, "T2", mm[2:4], "m"); sd.add(2, "T1", mm[4:6], "m")
    if n + 2 < 8: sd.add(2, "T2", xloads(XR, n + 2))
    sd.add(2, "P2", ln_sums(Y32, ST1))
    sd.add(3, "T1", ln_stats(ST1))
    sd.add(3, "P2", ln_norm(Y32, ST1))
    c = cvts(xn, Y32, 24)
    sd.add(4, "T1", c[:12]); sd.add(4, "T2", c[12:])
    return sd

OOB = 0x40000000

def prologue(cfg):
    L = []; e = L.append
    e(I("s_cmp_ge_u32", s(2), NWG)); e(I("s_cbranch_scc1", "L_end"))
    L += stamp(cfg)
    e(I("s_load_dwordx16", s(4, 16), s(0, 2), 0)); e(I("s_load_dwordx2", s(20, 2), s(0, 2), 64))
    tmp = lambda i: v(224 + i)
    lane, p, h = tmp(0), tmp(1), tmp(2)
    e(I("v_lshrrev_b32", tmp(3), 6, v(0)))
    e(I("v_and_b32", lane, 63, v(0)))
    e(I("v_readfirstlane_b32", sWAVE, tmp(3)))
    e(I("v_mov_b32", tmp(15), v(0)))
    tid = tmp(15)
    e(I("v_and_b32", p, 31, lane)); e(I("v_lshrrev_b32", h, 5, lane))
    e(I("v_lshlrev_b32", vB0, 4, lane))
    e(I("v_add_u32", vB1, 65536, vB0)); e(I("v_add_u32", vB2, 131072, vB0))
    e(I("s_lshl_b32", sT(0), s(2), 5)); e(I("s_add_u32", sT(0), sT(0), sWAVE)); e(I("s_mul_i32", sT(0), sT(0), TILE_B))
    e(I("v_mul_u32_u24", vX, 192, p)); e(I("v_mul_u32_u24", tmp(3), 96, h))
    e(I("v_add3_u32", vX, vX, tmp(3), sT(0)))
    e(wait(lgkm=0))
    for srd, ptr, size in ((sX, 4, X_BYTES), (sDW, 6, 192), (sW1, 8, 73728), (sW2, 10, 73728), (sGAM, 12, 768), (sBET, 14, 768),
                           (sOUT, 16, X_BYTES), (sDBG, 18, 256), (sWS, 20, TOT + 16 * TOT_STRIDE)):
        if (cfg.get("dbg") or cfg.get("stamps")) and srd is sWS: size = 1 << 28
        e(I("s_mov_b32", srd[0], s(ptr))); e(I("s_and_b32", srd[1], s(ptr + 1), 0xffff))
        e(I("s_mov_b32", srd[2], size)); e(I("s_mov_b32", srd[3], 0x20000))
    for k in range(4): e(I("v_mov_b32", tmp(4 + k), POISON))
    e(I("s_mul_i32", sT(1), s(2), 1536)); e(I("s_mul_i32", sT(2), sWAVE, 384)); e(I("s_add_u32", sT(1), sT(1), sT(2)))
    e(I("v_mov_b32", tmp(9), OOB))
    e(I("v_cmp_gt_u32", "vcc", 24, lane)); e(I("v_cndmask_b32", tmp(8), tmp(9), vB0, "vcc"))
    c1 = I("buffer_store_dwordx4", v(228, 4), tmp(8), sWS, sT(1), mods="offen sc1", wr={("fake", 0)}); e(c1)
    R_ = cfg["reps"]
    e(I("s_cmp_lt_u32", s(2), 96)); e(I("s_cselect_b32", sT(3), R_, 0))
    e(I("v_lshlrev_b32", tmp(10), 11, tid)); e(I("s_lshl_b32", sT(4), s(2), 4)); e(I("v_add_u32", tmp(10), sT(4), tmp(10)))
    e(I("v_cmp_gt_u32", "vcc", sT(3), tid)); e(I("v_cndmask_b32", tmp(10), tmp(9), tmp(10), "vcc"))
    e(I("s_mov_b32", sT(4), TOT))
    e(I("buffer_store_dwordx4", v(228, 4), tmp(10), sWS, sT(4), mods="offen sc1", wr={("fake", 1)}))
    q, hr, c0 = tmp(11), tmp(12), tmp(13)
    e(I("v_bfe_u32", q, p, 3, 1)); e(I("v_and_b32", tmp(3), 3, p)); e(I("v_lshl_add_u32", q, q, 2, tmp(3)))
    e(I("v_bfe_u32", hr, p, 2, 1)); e(I("v_lshrrev_b32", tmp(3), 4, p))
    e(I("v_lshl_add_u32", c0, tmp(3), 3, q)); e(I("v_mad_u32_u24", c0, hr, 48, c0)); e(I("v_lshlrev_b32", c0, 1, c0))
    dwv = [tmp(16 + t) for t in range(3)]
    for t in range(3): e(I("buffer_load_ushort", dwv[t], c0, sDW, 0, mods=f"offen offset:{32*t}"))
    L += xloads(XR, 0)
    wv = tmp(14)
    e(I("v_mul_u32_u24", wv, 24, p))
    e(I("s_mov_b32", sT(5), 48 * 768)); e(I("v_mad_u32_u24", wv, h, sT(5), wv))
    RW = lambda i, qq: v(16 + 32 * i + 4 * qq, 3)
    su = []
    for i in range(3):
        e(I("s_mul_i32", sT(0), sWAVE, 3)); e(I("s_add_u32", sT(0), sT(0), i))
        e(I("s_lshr_b32", sT(1), sT(0), 1)); e(I("s_and_b32", sT(2), sT(0), 1))
        e(I("s_mul_i32", sT(3), sT(1), 6144)); e(I("s_mul_i32", sT(4), sT(2), 12)); e(I("s_add_u32", sT(3), sT(3), sT(4)))
        e(I("s_add_u32", sT(4), sT(3), 3072))
        for qq in range(8):
            e(I("buffer_load_dwordx3", RW(i, qq), wv, sW1, sT(3 if qq < 4 else 4), mods=f"offen offset:{768*(qq%4)}"))
        d = s(84 + i)
        e(I("s_mul_i32", d, sT(2), 36)); e(I("s_add_u32", d, d, sT(1))); e(I("s_lshl_b32", d, d, 10)); su.append(d)
    e(I("s_mul_i32", sT(0), sWAVE, 18432))
    for c in range(5):
        e(I("s_add_u32", sT(1), sT(0), 4096 * c)); e(I("s_add_u32", sT(2), sT(1), W2F)); e(I("s_mov_b32", "m0", sT(2)))
        for k in range(4 if c < 4 else 2):
            e(I("buffer_load_dwordx4", vB0, sW2, sT(1), mods=f"offen offset:{1024*k} lds"))
    if cfg.get("pf", 1):
        e(I("s_getpc_b64", s(88, 2))); e(label("L_pc"))
        e(I("s_add_u32", s(88), s(88), "L_pf0-L_pc")); e(I("s_addc_u32", s(89), s(89), 0))
        e(I("s_lshr_b32", sT(0), s(2), 3)); e(I("s_and_b32", sT(0), sT(0), 3)); e(I("s_lshl_b32", sT(0), sT(0), 15))
        e(I("v_lshlrev_b32", tmp(20), 7, tid)); e(I("v_add_u32", tmp(20), sT(0), tmp(20)))
        e(I("s_mov_b32", sT(1), "L_pf1-L_pf0-4"))
        e(I("v_mov_b32", tmp(23), s(89)))
        e(I("v_min_u32", tmp(21), sT(1), tmp(20)))
        e(I("v_add_co_u32", tmp(24), "vcc", s(88), tmp(21)))
        e(I("v_addc_co_u32", tmp(25), "vcc", 0, tmp(23), "vcc"))
        e(I("global_load_dword", a(255), v(248, 2), "off"))
    e(I("s_lshl_b32", sT(0), sWAVE, 11)); e(I("s_add_u32", sT(0), sT(0), STG))
    t3, t19 = tmp(3), tmp(19)
    e(I("v_lshrrev_b32", t3, 2, p)); e(I("v_lshlrev_b32", vSW, 8, t3))
    e(I("v_xor_b32", t3, hr, h)); e(I("v_lshl_add_u32", vSW, t3, 6, vSW))
    e(I("v_and_b32", t3, 3, p)); e(I("v_lshl_add_u32", vSW, t3, 4, vSW)); e(I("v_add_u32", vSW, sT(0), vSW))
    e(I("v_lshlrev_b32", vSR, 8, h))
    e(I("v_bfe_u32", t3, lane, 4, 1)); e(I("v_lshl_add_u32", vSR, t3, 7, vSR))
    e(I("v_and_b32", t3, 1, lane)); e(I("v_xor_b32", t3, t3, h)); e(I("v_lshl_add_u32", vSR, t3, 6, vSR))
    e(I("v_bfe_u32", t3, lane, 2, 2)); e(I("v_lshl_add_u32", vSR, t3, 4, vSR))
    e(I("v_bfe_u32", t3, lane, 1, 1)); e(I("v_lshl_add_u32", vSR, t3, 3, vSR)); e(I("v_add_u32", vSR, sT(0), vSR))
    e(I("v_lshlrev_b32", t19, 4, p)); e(I("v_add_u32", t19, DIAG, t19))
    e(I("v_mov_b32", tmp(9), DIAG + 512))
    for u, d in ((0, vD0), (1, vD1)):
        e(I("v_lshrrev_b32", t3, 4, p)); e(I("v_xor_b32", t3, u, t3)); e(I("v_xor_b32", d, hr, h)); e(I("v_or_b32", t3, t3, d))
        e(I("v_cmp_eq_u32", "vcc", 0, t3)); e(I("v_cndmask_b32", d, tmp(9), t19, "vcc"))
    wa = tmp(10)
    e(I("v_cmp_eq_u32", "vcc", 0, h)); e(I("v_cndmask_b32", wa, tmp(9), t19, "vcc"))
    e(I("v_and_b32", t3, 1, q)); e(I("v_lshlrev_b32", t3, 4, t3)); e(I("v_mov_b32", tmp(8), 0xffff)); e(I("v_lshlrev_b32", tmp(8), t3, tmp(8)))
    e(I("v_lshrrev_b32", t3, 1, q)); e(I("v_lshl_or_b32", t3, h, 3, t3))
    MK = v(112, 4)
    for m in range(4):
        e(I("v_cmp_eq_u32", "vcc", m, t3)); e(I("v_cndmask_b32", MK[m], 0, tmp(8), "vcc"))
    DT = v(116, 4)
    for m in range(4): e(I("v_and_b32", DT[m], 0x3f803f80, MK[m]))
    e(I("ds_write_b128", wa, DT, mods=f"offset:{IDENT_REL}"))
    for t in range(3):
        D2 = v(120, 4) if t % 2 == 0 else DT
        e(I("v_lshl_or_b32", dwv[t], dwv[t], 16, dwv[t]))
        for m in range(4): e(I("v_and_b32", D2[m], dwv[t], MK[m]))
        e(I("ds_write_b128", wa, D2, mods=f"offset:{528*t}"))
    e(I("s_mov_b32", sNA[0], H(-AC))); e(I("s_mov_b32", sNA[1], H(-AC)))
    e(I("s_mov_b32", sONE[0], 1.0)); e(I("s_mov_b32", sONE[1], 1.0))
    e(I("s_mov_b32", sPL, 0x05040100)); e(I("s_mov_b32", sPH, 0x07060302))
    L += diag_reads(XB)
    L += ln_mfmas(Y32, XB, XR)
    L += xloads(XR, 1)
    pb = 0
    for i in range(3):
        e(I("v_add_u32", v(124), su[i], vB0))
        for jj in range(6):
            F = v(112 + 4 * (pb % 3), 4); pb += 1
            for m in range(4):
                e(I("v_perm_b32", F[m], RW(i, 2 * m + 1)[jj // 2], RW(i, 2 * m)[jj // 2], sPH if jj % 2 else sPL))
            e(I("ds_write_b128", v(124), F, mods=f"offset:{6144*jj}"))
    L += ln_sums(Y32, ST1) + ln_stats(ST1) + ln_norm(Y32, ST1) + cvts(XB, Y32, 24)
    e(I("v_mov_b32", v(124), OOB)); e(I("v_mov_b32", v(126), 0)); e(I("v_cmp_eq_u32", "vcc", 0, tid))
    e(I("v_cndmask_b32", v(124), v(124), v(126), "vcc"))
    e(I("v_mov_b32", v(125), 1))
    e(I("s_nop", 0, rd={("fake", 0), ("fake", 1)}))
    e(wait(lgkm=0)); e(I("s_barrier"))
    e(I("buffer_atomic_add", v(125), v(124), sDBG, 0, mods="offen sc1"))
    for k in range(3): e(w1frag(WF[k], 0, k))
    for k in range(6):
        e(mfma(Y[0], XB.sub(4 * k, 4), WF[k % 3], 0 if k == 0 else None))
        e(w1frag(WF[k % 3], 0, k + 3) if k < 3 else w1frag(WF[k % 3], 1, k - 3))
    g = gelu_parts(Y[1], Y[0])
    L += g["a1"] + g["a2"]
    return L

STAMPS = []
def stamp(cfg):
    if not cfg.get("stamps"): return []
    k = len(STAMPS); STAMPS.append(k)
    if k == 0:
        return [I("s_memtime", s(96, 2)), I("s_memrealtime", s(98, 2))]
    assert k <= 8
    return [I("s_memtime", s(100, 2)), I("s_memrealtime", s(82, 2)), wait(lgkm=0),
            I("s_mov_b32", s(2 + 2 * k), s(100)), I("s_mov_b32", s(3 + 2 * k), s(82))]
def stamp_dump(cfg):
    if not cfg.get("stamps"): return []
    L = [wait(vm=0, lgkm=0), nop(15), I("s_lshl_b32", sT(0), s(2), 2), I("s_add_u32", sT(0), sT(0), sWAVE), I("s_lshl_b32", sT(0), sT(0), 8),
         I("s_add_u32", sT(0), sT(0), 1 << 20), I("v_mov_b32", v(16), 0)]
    if cfg["stamps"] == 2:
        L = [wait(vm=0, lgkm=0), nop(15), I("s_lshl_b32", sT(0), s(2), 2), I("s_add_u32", sT(0), sT(0), sWAVE),
             I("s_cmp_eq_u32", sT(0), 513), I("s_cselect_b32", sT(1), 0, OOB), I("v_mov_b32", v(16), sT(1))]
        for k in range(1, len(STAMPS)):
            L += [I("s_sub_u32", sT(2), s(3 + 2 * k), s(98)), I("v_mov_b32", v(18), sT(2)),
                  I("buffer_store_dword", v(18), v(16), sDBG, 0, mods=f"offen offset:{4*k}"), nop(1)]
        L += [I("s_sub_u32", sT(2), s(18), s(96)), I("v_mov_b32", v(18), sT(2)), I("buffer_store_dword", v(18), v(16), sDBG, 0, mods="offen offset:40")]
        return L
    for k in range(len(STAMPS)):
        a0, a1 = (s(96), s(98)) if k == 0 else (s(2 + 2 * k), s(3 + 2 * k))
        L += [I("v_mov_b32", v(18), a0), I("v_mov_b32", v(19), a1),
              I("buffer_store_dwordx2", v(18, 2), v(16), sWS, sT(0), mods=f"offen offset:{8*k}"), nop(1)]
    return L

def spin_begin(name, limit):
    return [I("s_mov_b32", sCNT, limit), label(name)]
def spin_end(name, done):
    return [I("s_cbranch_vccz", done), I("s_sub_u32", sCNT, sCNT, 1), I("s_cmp_lg_u32", sCNT, 0), I("s_cbranch_scc1", name), label(done)]
SPIN = 1 << 17

def check_cleared(tag, t0):
    L = spin_begin(f"L_clr{tag}", SPIN)
    L += [I("v_mov_b32", t0, 0), I("buffer_load_dword", t0, t0, sDBG, 0, mods="offen sc1"), wait(vm=0),
          I("v_cmp_gt_u32", "vcc", NWG, t0), nop(4)]
    return L + spin_end(f"L_clr{tag}", f"L_clrd{tag}")

def sync_phase(cfg):
    L = []; e = L.append
    e(label("sync"))
    pre, post = stash_ops(7, 11, Y[1]); L += pre + post
    A = ACC1
    for J in range(12): e(I("v_add_f32", A[2 * J], A[2 * J], A[2 * J + 1]))
    for m in range(6):
        e(I("v_permlane32_swap_b32", A[4 * m], A[4 * m + 2]))
    for m in range(6): e(I("v_add_f32", A[4 * m], A[4 * m], A[4 * m + 2]))
    t = lambda i: v(16 + i)
    lane4 = t(0)
    e(I("v_lshrrev_b32", lane4, 2, vB0))
    e(I("s_lshl_b32", sT(0), sWAVE, 11)); e(I("s_add_u32", sT(0), sT(0), STG)); e(I("v_add_u32", t(1), sT(0), lane4))
    for m in range(6): e(I("ds_write_b32", t(1), A[4 * m], mods=f"offset:{256*m}"))
    e(wait(vm=0, lgkm=0)); e(I("s_barrier")); e(clear())
    e(I("s_lshl_b32", sT(0), sWAVE, 10)); e(I("v_add_u32", t(2), sT(0), vB0))
    e(I("v_add_u32", t(3), STG, t(2)))
    for w in range(4): e(I("ds_read_b128", v(24 + 4 * w, 4), t(3), mods=f"offset:{2048*w}"))
    e(I("v_mov_b32", t(4), OOB)); e(I("v_cmp_gt_u32", "vcc", 1536, t(2))); e(I("v_cndmask_b32", t(2), t(4), t(2), "vcc"))
    for k in (0, 2):
        e(pk("add", v(24 + k, 2), v(24 + k, 2), v(28 + k, 2))); e(pk("add", v(32 + k, 2), v(32 + k, 2), v(36 + k, 2)))
    for k in (0, 2): e(pk("add", v(24 + k, 2), v(24 + k, 2), v(32 + k, 2)))
    e(I("s_mul_i32", sT(1), s(2), 1536))
    e(I("buffer_store_dwordx4", v(24, 4), t(2), sWS, sT(1), mods="offen sc1"))
    e(I("s_cmp_lg_u32", sWAVE, 3)); e(I("s_cbranch_scc1", "L_nored"))
    e(I("s_cmp_ge_u32", s(2), 96)); e(I("s_cbranch_scc1", "L_nored"))
    L += check_cleared("a", t(5))
    e(I("v_mul_u32_u24", t(5), 96, vB0)); e(I("s_lshl_b32", sT(1), s(2), 4)); e(I("v_add_u32", t(5), sT(1), t(5)))
    for k in range(1, 4): e(I("s_mov_b32", s(90 + k), 64 * 1536 * k))
    L += spin_begin("L_red", SPIN)
    for k in range(4):
        e(I("buffer_load_dwordx4", v(24 + 4 * k, 4), t(5), sWS, s(90 + k) if k else 0, mods="offen sc1"))
    e(wait(vm=0))
    e(I("v_max3_u32", t(6), v(24), v(25), v(26)))
    for k in range(27, 39, 2): e(I("v_max3_u32", t(6), t(6), v(k), v(k + 1)))
    e(I("v_max_u32", t(6), t(6), v(39)))
    e(I("v_cmp_eq_u32", "vcc", POISON, t(6))); e(nop(4))
    L += spin_end("L_red", "L_redd")
    e(clear())
    for k in (0, 2):
        e(pk("add", v(24 + k, 2), v(24 + k, 2), v(28 + k, 2))); e(pk("add", v(32 + k, 2), v(32 + k, 2), v(36 + k, 2)))
    for k in (0, 2): e(pk("add", v(24 + k, 2), v(24 + k, 2), v(32 + k, 2)))
    e(I("v_permlane32_swap_b32", v(24), v(25))); e(I("v_permlane32_swap_b32", v(26), v(27)))
    e(I("v_add_f32", v(24), v(24), v(25))); e(I("v_add_f32", v(26), v(26), v(27)))
    e(I("v_permlane16_swap_b32", v(24), v(26))); e(I("v_add_f32", v(24), v(24), v(26)))
    for r in (8, 4, 2, 1):
        e(I("v_add_f32_dpp", v(24), v(24), v(24), mods=f"row_ror:{r} row_mask:0xf bank_mask:0xf"))
    e(I("v_lshrrev_b32", t(6), 4, vB0))
    e(I("v_and_b32", t(7), 15, t(6))); e(I("v_lshrrev_b32", t(6), 4, t(6)))
    e(I("v_and_b32", t(9), 1, t(6))); e(I("v_lshrrev_b32", t(6), 1, t(6))); e(I("v_lshl_or_b32", t(6), t(9), 1, t(6)))
    e(I("v_lshlrev_b32", t(6), 2, t(6))); e(I("v_lshl_add_u32", t(6), t(7), 11, t(6))); e(I("v_add_u32", t(6), sT(1), t(6)))
    e(I("v_cmp_gt_u32", "vcc", cfg["reps"], t(7))); e(I("v_cndmask_b32", t(6), t(4), t(6), "vcc"))
    e(I("s_mov_b32", sT(2), TOT))
    e(I("buffer_store_dword", v(24), t(6), sWS, sT(2), mods="offen sc1"))
    e(wait(vm=0, lgkm=0)); e(nop(1))
    e(label("L_nored")); e(clear())
    RF = lambda jj, u, tt: v(16 + 4 * ((jj * 2 + u) * 3 + tt), 4)
    BF = lambda jj, u: v(104 + 4 * (jj * 2 + u), 4)
    BD = v(88, 16)
    lane, ta, tb = v(8), v(9), v(10)
    e(I("v_lshrrev_b32", lane, 4, vB0))
    e(I("v_bfe_u32", ta, lane, 3, 1)); e(I("v_lshlrev_b32", tb, 4, ta))
    e(I("v_bfe_u32", ta, lane, 1, 1)); e(I("v_lshl_add_u32", tb, ta, 3, tb))
    e(I("v_bfe_u32", ta, lane, 2, 1)); e(I("v_lshl_add_u32", tb, ta, 2, tb))
    e(I("v_and_b32", ta, 1, lane)); e(I("v_lshl_add_u32", tb, ta, 1, tb))
    e(I("v_mul_u32_u24", tb, 12, tb)); e(I("v_lshrrev_b32", ta, 4, lane)); e(I("v_add_u32", tb, tb, ta))
    e(I("s_mul_i32", sT(0), sWAVE, 3)); e(I("v_add_u32", tb, sT(0), tb)); e(I("v_lshlrev_b32", tb, 1, tb))
    e(I("buffer_load_ushort", v(11), tb, sBET, 0, mods="offen")); e(I("buffer_load_ushort", v(12), tb, sBET, 0, mods="offen offset:24"))
    e(I("v_and_b32", ta, 15, lane)); e(I("v_mul_u32_u24", ta, 48, ta)); e(I("v_lshrrev_b32", v(13), 4, lane)); e(I("v_lshl_add_u32", ta, v(13), 1, ta))
    tr = v(13)
    e(I("v_lshrrev_b32", tr, 5, lane)); e(I("v_lshlrev_b32", tr, 2, tr)); e(I("v_bfe_u32", tb, lane, 2, 2)); e(I("v_add_u32", tr, tr, tb))
    e(I("v_mul_u32_u24", tr, 2304, tr))
    e(I("v_and_b32", tb, 1, lane)); e(I("v_mad_u32_u24", tr, tb, s(94), tr)); L.insert(len(L) - 1, I("s_mov_b32", s(94), 96))
    e(I("v_bfe_u32", tb, lane, 4, 1)); e(I("v_lshl_add_u32", tr, tb, 4, tr))
    e(I("v_bfe_u32", tb, lane, 1, 1)); e(I("v_lshl_add_u32", tr, tb, 3, tr))
    e(I("s_mul_i32", sT(1), sWAVE, 576)); e(I("s_add_u32", sT(1), sT(1), W2F)); e(I("v_add_u32", tr, sT(1), tr))
    for jj in range(3):
        for u in range(2):
            for tt in range(3):
                for w in range(2):
                    e(I("ds_read_b64_tr_b16", RF(jj, u, tt).sub(2 * w, 2), tr, mods=f"offset:{(16*u+8*w)*2304+jj*192+32*tt}"))
    e(I("v_lshl_or_b32", v(11), v(12), 16, v(11)))
    e(I("s_mul_i32", sT(2), sWAVE, 192)); e(I("s_add_u32", sT(2), sT(2), BETA))
    e(I("v_lshlrev_b32", v(12), 2, lane)); e(I("v_add_u32", v(12), sT(2), v(12)))
    e(I("s_mov_b32", "exec_hi", 0xffff, wr={("exec", 0)}))
    e(I("ds_write_b32", v(12), v(11)))
    e(I("s_mov_b32", "exec_hi", -1, wr={("exec", 0)}))
    e(I("v_lshrrev_b32", v(12), 5, lane)); e(I("v_lshlrev_b32", v(12), 4, v(12))); e(I("v_add_u32", v(12), sT(2), v(12)))
    for jj in range(3):
        for u in range(2): e(I("ds_read_b128", BF(jj, u), v(12), mods=f"offset:{64*jj+32*u}"))
    e(I("s_mul_i32", sT(2), sWAVE, 384)); e(I("s_add_u32", sT(2), sT(2), BIASP))
    e(I("v_lshrrev_b32", v(12), 5, lane)); e(I("v_mul_u32_u24", v(12), 192, v(12))); e(I("v_add_u32", v(12), sT(2), v(12)))
    for tt in range(3):
        for k in range(6): e(mfma(BD, RF(k // 2, k % 2, tt), BF(k // 2, k % 2), 0 if k == 0 else None))
        e(I("s_mov_b32", "exec_lo", 1, wr={("exec", 0)}, rd=BD.regs())); e(I("s_mov_b32", "exec_hi", 1, wr={("exec", 0)}))
        for j in range(4): e(I("ds_write_b128", v(12), BD.sub(4 * j, 4), mods=f"offset:{64*tt+16*j}"))
        e(I("s_mov_b64", "exec", -1))
    e(wait(vm=0, lgkm=0)); e(nop(7)); e(clear())
    e(I("s_cmp_lg_u32", sWAVE, 0)); e(I("s_cbranch_scc1", "L_notot"))
    GM = v(88, 6); TV = v(96, 6)
    for k in range(3):
        for i in range(2): e(I("buffer_load_ushort", GM[2 * k + i], ta, sGAM, 0, mods=f"offen offset:{8*k+24*i}"))
    L += check_cleared("b", v(11))
    e(I("s_and_b32", sT(1), s(2), cfg["reps"] - 1)); e(I("s_lshl_b32", sT(1), sT(1), 11)); e(I("s_add_u32", sT(1), sT(1), TOT))
    e(I("v_lshlrev_b32", v(11), 3, lane))
    L += spin_begin("L_tot", SPIN)
    for k in range(3): e(I("buffer_load_dwordx2", TV.sub(2 * k, 2), v(11), sWS, sT(1), mods=f"offen offset:{512*k} sc1"))
    e(wait(vm=0))
    e(I("v_max3_u32", v(12), TV[0], TV[1], TV[2])); e(I("v_max3_u32", v(12), v(12), TV[3], TV[4])); e(I("v_max_u32", v(12), v(12), TV[5]))
    e(I("v_cmp_eq_u32", "vcc", POISON, v(12))); e(nop(4))
    L += spin_end("L_tot", "L_totd")
    e(clear())
    for k in range(6): e(I("v_mul_f32", TV[k], H(1 / (CS * CS)), TV[k]))
    for k in range(6): e(I("v_add_f32", TV[k], H(1e-6), TV[k]))
    for k in range(6): e(I("v_sqrt_f32", TV[k], TV[k]))
    for k in range(6): e(I("v_lshlrev_b32", GM[k], 16, GM[k]))
    sm, s2 = v(104), v(105)
    e(I("v_add_f32", sm, TV[0], TV[1])); e(I("v_add_f32", s2, TV[2], TV[3])); e(I("v_add_f32", sm, sm, TV[4])); e(I("v_add_f32", s2, s2, TV[5]))
    e(I("v_add_f32", sm, sm, s2))
    for r in (8, 4, 2, 1): e(I("v_add_f32_dpp", sm, sm, sm, mods=f"row_ror:{r} row_mask:0xf bank_mask:0xf"))
    e(I("v_mov_b32", s2, sm)); e(I("v_permlane16_swap_b32", sm, s2)); e(I("v_add_f32", sm, sm, s2))
    e(I("v_mov_b32", s2, sm)); e(I("v_permlane32_swap_b32", sm, s2)); e(I("v_add_f32", sm, sm, s2))
    e(I("v_mul_f32", sm, H(1 / 384), sm)); e(I("v_add_f32", sm, H(1e-6), sm))
    e(I("v_rcp_f32", s2, sm))
    e(I("v_fma_f32", v(106), f"-{sm}", s2, 1.0, rd=sm.regs() | s2.regs())); e(I("v_fmac_f32", s2, v(106), s2))
    e(I("v_mul_f32", s2, H(1 / CS), s2))
    for k in range(6): e(I("v_mul_f32", TV[k], TV[k], s2))
    for k in range(6): e(I("v_fmaak_f32", TV[k], TV[k], GM[k], H(1 / CS)))
    e(I("v_add_u32", v(11), SARR, v(11)))
    for k in range(3): e(I("ds_write_b64", v(11), TV.sub(2 * k, 2), mods=f"offset:{512*k}"))
    e(wait(vm=0, lgkm=0))
    e(label("L_notot")); e(I("s_barrier")); e(clear()); e(label("scale"))
    e(I("s_lshl_b32", sT(0), sWAVE, 8)); e(I("v_lshlrev_b32", v(9), 2, lane)); e(I("v_add_u32", v(9), sT(0), v(9)))
    e(I("v_min_u32", v(9), 380, v(9))); e(I("v_add_u32", v(9), BIASP, v(9)))
    for w in range(4): e(I("ds_read_b32", v(120 + w), v(9), mods=f"offset:{384*w}"))
    e(I("s_mul_i32", sT(0), sWAVE, 384)); e(I("s_add_u32", sT(0), sT(0), SARR))
    e(I("v_lshrrev_b32", v(10), 5, lane)); e(I("v_lshlrev_b32", v(10), 4, v(10))); e(I("v_add_u32", v(10), sT(0), v(10)))
    SV = lambda k: v(88 + 8 * (k % 2), 8)
    def sread(k):
        jj, u = k // 2, k % 2
        return [I("ds_read_b128", SV(k).sub(4 * w, 4), v(10), mods=f"offset:{128*jj+64*u+32*w}") for w in range(2)]
    L += sread(0) + sread(1)
    e(I("v_add_f32", v(120), v(120), v(121))); e(I("v_add_f32", v(122), v(122), v(123))); e(I("v_add_f32", v(120), v(120), v(122)))
    e(I("ds_write_b32", v(9), v(120), mods=f"offset:{BIAS-BIASP}"))
    e(I("s_mul_i32", sT(1), sWAVE, 18432)); e(I("v_add_u32", v(11), sT(1), vB1))
    for k in range(6):
        jj, u = k // 2, k % 2
        for tt in range(3):
            F = RF(jj, u, tt); U = v(104 + 8 * (tt % 2), 8)
            for m in range(4):
                e(I("v_lshlrev_b32", U[2 * m], 16, F[m])); e(I("v_and_b32", U[2 * m + 1], 0xffff0000, F[m]))
            for m in range(4): e(pk("mul", U.sub(2 * m, 2), U.sub(2 * m, 2), SV(k).sub(2 * m, 2)))
            L += cvts(F, U, 4)
            e(I("ds_write_b128", v(11), F, mods=f"offset:{W2F-65536+((jj*2+u)*3+tt)*1024}"))
        if k + 2 < 6: L += sread(k + 2)
    e(I("v_lshrrev_b32", vSW, 5, lane)); e(I("v_mul_u32_u24", vSW, 192, vSW)); e(I("v_add_u32", vSW, BIAS, vSW))
    e(wait(lgkm=0)); e(I("s_barrier"))
    return L

vBIAS = vSW
IDF = [v(8, 4), v(12, 4)]
def bias_reads(acc, t): return [I("ds_read_b128", acc.sub(16 * t + 4 * j, 4), vBIAS, mods=f"offset:{64*t+16*j}") for j in range(4)]
def res_mfmas(acc, xr): return [mfma(acc.sub(16 * t, 16), IDF[u], xr.sub(8 * t + 4 * u, 4)) for t in range(3) for u in range(2)]

XR2 = [a(216, 24), a(0, 24)]
DG2 = a(24, 24)
F1 = [a(48 + 4 * k, 4) for k in range(6)]
F2 = [a(72 + 4 * k, 4) for k in range(6)]
G = v(88, 8)
AC2 = [v(128, 48), v(176, 48)]
X2 = [XA, v(224, 24)]
ST2 = v(248, 6)

def pair(na, nb, acca, accb, xa, xb, first, extra, tail_order):
    PF = [v(112 + 4 * k, 4) for k in range(4)]
    L = [label(f"p2pair_{na}")]
    seq = [(sig, t) for sig in range(24) for t in range(3)]
    if first:
        L += [I("ds_read_b128", IDF[u], (vD0, vD1)[u], mods=f"offset:{IDENT_REL}") for u in range(2)]
        for t in range(3): L += bias_reads(acca, t)
        for k in range(3): L.append(w2frag(PF[k], *seq[k]))
    pend = []
    for k, (sig, t) in enumerate(seq):
        if t == 0: pend += extra.get(sig, [])
        f = PF[k % 4]
        da, db = acca.sub(16 * t, 16), accb.sub(16 * t, 16)
        L.append(mfma(db, f, stash(nb, sig), da if sig == 0 else None))
        if k + 3 < 72: L.append(w2frag(PF[(k + 3) % 4], *seq[k + 3]))
        n = min(len(pend), 2); L += pend[:n]; pend = pend[n:]
        L.append(mfma(da, f, stash(na, sig)))
        n = min(len(pend), 3); L += pend[:n]; pend = pend[n:]
    L += pend
    return L

def pass2_pairs():
    L = []
    a1, b1 = v(16, 48), v(64, 48)
    x6, x7 = a(192, 24), a(216, 24)
    ex = {6: xloads(x6, 6), 12: xloads(x7, 7) + sum((bias_reads(AC2[0], t) for t in range(3)), [])}
    L += pair(6, 7, a1, b1, x6, x7, True, ex, None)
    PF = [v(112 + 4 * k, 4) for k in range(4)]
    ra, rb = res_mfmas(a1, x6), res_mfmas(b1, x7)
    pf = [w2frag(PF[k], 0, k) for k in range(3)]
    for k in range(6):
        L += [ra[k]] + ([pf[k]] if k < 3 else []) + [rb[k]]
    x4, x5 = v(224, 24), a(192, 24)
    ex = {0: xloads(x4, 4) + xloads(x5, 5) + xloads(XR2[0], 0),
          1: cvts(a1, a1, 24) + ostores(a1, 6) + cvts(b1, b1, 24) + ostores(b1, 7),
          6: diag_reads(X2[0]), 12: diag_reads(DG2), 18: [w1frag(F1[k], 0, k) for k in range(6)]}
    y32 = v(16, 48)
    L2 = pair(4, 5, AC2[0], AC2[1], x4, x5, False, ex, None)
    idx = [i for i, x in enumerate(L2) if x.kind == "mfma"]
    ins = {}
    mm = ln_mfmas(y32, X2[0], XR2[0])
    for k, m in enumerate(mm): ins.setdefault(idx[6 * 7 + 2 * k], []).append(m)
    sc = xloads(XR2[1], 1) + ln_sums(y32, ST2, True) + ln_stats(ST2) + ln_norm(y32, ST2, True) + cvts(X2[0], y32, 24)
    pos = 6 * 9
    while sc:
        ins.setdefault(idx[pos], []).extend(sc[:4]); sc = sc[4:]; pos += 1
    assert pos < len(idx)
    for i, x in enumerate(L2):
        L.append(x); L += ins.get(i, [])
    ra, rb = res_mfmas(AC2[0], x4), res_mfmas(AC2[1], x5)
    L += ra
    g1 = [mfma(Y[0], F1[k], X2[0].sub(4 * k, 4), 0 if k == 0 else None) for k in range(6)]
    ep = cvts(AC2[0], AC2[0], 24) + ostores(AC2[0], 4)
    fill = [w1frag(F1[k], 1, k) for k in range(6)]
    L += rb[:3]
    ms = [(m, []) for m in rb[3:]] + [(g1[k], [fill[k]]) for k in range(6)]
    L += weave(ms, ep + sum((bias_reads(AC2[0], t) for t in range(3)), []), gap=20, tail=0)
    g = gelu_parts(Y[1], Y[0])
    L += g["a1"] + g["a2"]
    return L

def p2_group(n, j, side, last=False):
    y, yn = Y[j % 2], Y[(j + 1) % 2]
    g = gelu_parts(y, yn)
    n1, j1 = (n, j + 1) if j < 11 else (n + 1, 0)
    n2, j2 = (n1, j1 + 1) if j1 < 11 else (n1 + 1, 0)
    pn, pj = (n, j - 1) if j > 0 else (n - 1, 11)
    L = [label(f"p2_{n}_{j}")]
    m1, m2 = [], []
    if pn >= 0:
        L += cvts(G, yn, 8)
        acc = AC2[pn % 2]
        for k in range(6):
            u, t = k // 3, k % 3
            m2.append((mfma(acc.sub(16 * t, 16), F2[k], G.sub(4 * u, 4)), []))
    f1 = [w1frag(F1[k], j2, k) for k in range(6)] if (n2 < 4 and not last) else []
    f2 = [w2frag(F2[k], 2 * j + k // 3, k % 3) for k in range(6)]
    if not last:
        xn = X2[n1 % 2]
        for k in range(6):
            m1.append((mfma(yn, F1[k], xn.sub(4 * k, 4), 0 if k == 0 else None), []))
    m1 += [(m, []) for m in side.get(j, "T1", "m")]
    m2 += [(m, []) for m in side.get(j, "T2", "m")]
    L += weave(m1, merge(g["exp"], side.get(j, "T1")) + f1)
    L += g["add"] + side.get(j, "P1")
    L += weave(m2, merge(g["rcp"], side.get(j, "T2")) + f2)
    L += g["mul"]
    if not last: L += g["a1"] + g["a2"]
    L += side.get(j, "P2")
    return L

def p2_side(n):
    sd = Side()
    prev = AC2[(n + 1) % 2]
    xo = X2[(n + 1) % 2]
    if n == 0:
        r0 = res_mfmas(AC2[0], XR2[0])
        sd.add(0, "T2", r0, "m")
    c = cvts(xo, prev, 24); st = ostores(xo, 5 if n == 0 else n - 1)
    sd.add(1, "T1", c[0:8] + st[0:3]); sd.add(1, "T2", c[8:16] + st[3:5]); sd.add(2, "T1", c[16:24] + st[5:7])
    if n == 3: return sd
    xr = XR2[(n + 1) % 2]
    mm = ln_mfmas(prev, DG2, xr)
    for k, (j, ph) in enumerate(((1, "T2"), (2, "T1"), (2, "T2"), (3, "T1"), (3, "T2"), (4, "T1"))):
        sd.add(j, ph, [mm[k]], "m")
    if n + 2 < 4: sd.add(2, "T2", xloads(XR2[n % 2], n + 2))
    sm = ln_sums(prev, ST2)
    sd.add(2, "P2", sm[:15]); sd.add(3, "P2", sm[15:31]); sd.add(4, "P2", sm[31:])
    sd.add(5, "T1", ln_stats(ST2))
    sd.add(5, "P2", ln_norm(prev, ST2))
    c = cvts(xo, prev, 24)
    sd.add(6, "T1", c[0:8]); sd.add(6, "T2", c[8:16] + bias_reads(prev, 0)); sd.add(7, "T1", c[16:24] + bias_reads(prev, 1))
    sd.add(7, "T2", bias_reads(prev, 2))
    rr = res_mfmas(prev, xr)
    for k, (j, ph) in enumerate(((7, "T1"), (7, "T2"), (8, "T1"), (8, "T2"), (9, "T1"), (9, "T2"))):
        sd.add(j, ph, [rr[k]], "m")
    return sd

def tail():
    L = [label("tail")]
    L += cvts(G, Y[1], 8)
    acc = AC2[1]
    for k in range(6):
        u, t = k // 3, k % 3
        L.append(mfma(acc.sub(16 * t, 16), F2[k], G.sub(4 * u, 4)))
    L += cvts(acc, acc, 24) + ostores(acc, 3)
    return L

def build(cfg):
    P = prologue(cfg)
    P.append(label("L_pf0"))
    for n in range(8):
        sd = p1_side(n)
        for j in range(12): P += p1_group(n, j, sd, last=(n == 7 and j == 11))
    P += sync_phase(cfg)
    P += pass2_pairs()
    for n in range(4):
        sd = p2_side(n)
        for j in range(12): P += p2_group(n, j, sd, last=(n == 3 and j == 11))
    P += tail()
    P.append(label("end"))
    if cfg.get("stamps"):
        Q = []
        for x in P:
            Q.append(x)
            if x.kind == "label" and x.ops[0] in cfg["at"]: Q += stamp(cfg)
        P = Q
    P += stamp_dump(cfg)
    if CFG.get("fixeddur"):
        if CFG.get("wb"): P += [wait(vm=0, lgkm=0), I("buffer_wbl2", mods="sc1", kind="vms", rd=set(), wr=set())]
        P += [wait(vm=0, lgkm=0), label("L_fix"), I("s_memrealtime", s(82, 2)), wait(lgkm=0), I("s_sub_u32", s(82), s(82), s(98)),
              I("s_cmp_lt_u32", s(82), int(CFG["fixeddur"])), I("s_cbranch_scc1", "L_fix")]
    P.append(label("L_pf1"))
    P.append(label("L_end"))
    return finalize(P, P)

HEADER = """; ConvNeXt-V2 block (1x1 depthwise, LayerNorm, 96->384 GEMM, tanh-GELU, GRN, 384->96 GEMM, residual), gfx950.
; One persistent workgroup per CU; half of the GELU activations stay in registers across the grid-wide GRN reduction.
; @launch grid=(256,1,1) block=(256,1,1) lds=163840
.amdgcn_target "amdgcn-amd-amdhsa--gfx950"
.text
.globl {k}
.p2align 8
.type {k},@function
{k}:
"""
FOOTER = """
s_endpgm
.section .rodata,"a"
.p2align 6
.amdhsa_kernel {k}
  .amdhsa_next_free_vgpr 512
  .amdhsa_next_free_sgpr 102
  .amdhsa_accum_offset 256
  .amdhsa_group_segment_fixed_size 0
  .amdhsa_kernarg_size 72
  .amdhsa_user_sgpr_count 2
  .amdhsa_user_sgpr_kernarg_segment_ptr 1
  .amdhsa_system_sgpr_workgroup_id_x 1
  .amdhsa_float_denorm_mode_32 3
.end_amdhsa_kernel
"""
USED_LABELS = ("L_",)
def render(seq, keep_labels=False):
    body = [x for x in seq if x.kind != "label" or keep_labels or x.ops[0].startswith("L_")]
    return HEADER.format(k=KERNEL) + emit(body) + FOOTER.format(k=KERNEL)

if __name__ == "__main__":
    ap = argparse.ArgumentParser()
    ap.add_argument("-o", default="standalone__modern_conv_block_convnext_v2__vision.s")
    ap.add_argument("--reps", type=int, default=8)
    ap.add_argument("--pf", type=int, default=1)
    ap.add_argument("--dbg", type=int, default=0)
    ap.add_argument("--marks", action="store_true")
    ap.add_argument("-x", action="append", default=[])
    ap.add_argument("--stamps", type=int, default=0)
    ap.add_argument("--at", default="L_pf0,p1_4_0,sync,L_nored,scale,p2pair_6,p2_0_0,end")
    A = ap.parse_args()
    for kv in A.x:
        k, _, val = kv.partition("="); CFG[k] = val.replace("+", " ") if val else 1
    cfg = dict(reps=A.reps, pf=A.pf, pfn=8, dbg=A.dbg, stamps=A.stamps, at=A.at.split(','))
    seq = build(cfg)
    txt = render(seq)
    open(A.o, "w").write(txt)
    marks = []
    tot, st, cnt = timing(seq, marks=marks)
    nb = sum(x.size() for x in seq)
    print(f"{len(seq)} items, {nb} code bytes, {len(txt)} chars; model cycles {tot}, stalls {st}\n{cnt}")
    if A.marks:
        for (n0, t0), (n1, t1) in zip(marks, marks[1:]): print(n0, t1 - t0)
```
